```python
import torch

def _softmax(x, axis=-1):
    return torch.softmax(x, dim=axis)
def _gelu(x):
    return torch.nn.functional.gelu(x, approximate="tanh")
def _silu(x):
    return torch.nn.functional.silu(x)
def _sigmoid(x):
    return torch.sigmoid(x)
def _layernorm(x, axis=-1, eps=1e-5):
    m = x.mean(dim=axis, keepdim=True)
    v = x.var(dim=axis, keepdim=True, unbiased=False)
    return (x - m) / torch.sqrt(v + eps)
def _scatter_add(tgt, idx, src, axis=0):
    return tgt.clone().index_add_(axis, idx, src)
def _segment_sum(src, seg, n):
    out = torch.zeros((n,) + src.shape[1:], dtype=src.dtype)
    return out.index_add_(0, seg, src)
def _pad(x, pw):
    flat = tuple(v for pair in reversed(pw) for v in pair)
    return torch.nn.functional.pad(x, flat)

kernel_name = 'recurrent_scan__sliding_block__glu_gated_bilinear__prompt'

def setup_inputs():

    _w = (lambda a: (lambda t: t.to(torch.bfloat16) if t.is_floating_point() else t)(torch.as_tensor(a)))
    def _A_setup():
        B, S, D = 1, 2048, 1024
        return {
            "x": _w((lambda *s: torch.randn(*s, dtype=torch.bfloat16) * 0.05)(B, S, D)),
            "wqkv": _w((lambda *s: torch.randn(*s, dtype=torch.bfloat16) * 0.2)(D, 3 * D)),
            "wo": _w((lambda *s: torch.randn(*s, dtype=torch.bfloat16) * 0.2)(D, D)),
        }
    _A_in = _A_setup()

    def _B_setup():
        B, S, D, F = 1, 2048, 1024, 3584
        return {
            "x": _w((lambda *s: torch.randn(*s, dtype=torch.bfloat16) * 0.05)(B, S, D)),
            "w_gate": _w((lambda *s: torch.randn(*s, dtype=torch.bfloat16) * 0.1)(D, F) * (D ** -0.5)),
            "w_up": _w((lambda *s: torch.randn(*s, dtype=torch.bfloat16) * 0.1)(D, F) * (D ** -0.5)),
            "w_down": _w((lambda *s: torch.randn(*s, dtype=torch.bfloat16) * 0.1)(F, D) * (F ** -0.5)),
        }
    _B_in = _B_setup()

    return {
        "A_x": _A_in["x"],
        "A_wqkv": _A_in["wqkv"],
        "A_wo": _A_in["wo"],
        "B_x": _B_in["x"],
        "B_w_gate": _B_in["w_gate"],
        "B_w_up": _B_in["w_up"],
        "B_w_down": _B_in["w_down"],
    }

def reference(A_x, A_wqkv, A_wo, B_x, B_w_gate, B_w_up, B_w_down):
    def _A_ref(x, wqkv, wo):
        B, S, D = x.shape
        H = 32; Dh = D // H; W = 256
        qkv = (lambda x, *d: x.permute(*d))((x @ wqkv).reshape(B, S, 3, H, Dh), 2, 0, 3, 1, 4)
        q, k, v = qkv[0], qkv[1], qkv[2]
        scores = torch.einsum("bhqd,bhkd->bhqk", q, k) * (Dh ** -0.5)
        idx = torch.arange(S)
        mask = (idx[:, None] - idx[None, :] >= 0) & (idx[:, None] - idx[None, :] < W)
        scores = torch.where(mask[None, None], scores, -1e9)
        p = _softmax(scores, axis=-1)
        o = torch.einsum("bhqk,bhkd->bhqd", p, v)
        return (lambda x, *d: x.permute(*d))(o, 0, 2, 1, 3).reshape(B, S, D) @ wo

    def _B_ref(x, w_gate, w_up, w_down):
        g = torch.einsum("bsd,df->bsf", x, w_gate)
        u = torch.einsum("bsd,df->bsf", x, w_up)
        h = g * u
        return torch.einsum("bsf,fd->bsd", h, w_down)

    x = A_x
    xn = _layernorm(x, axis=-1)
    s = _A_ref(xn, A_wqkv, A_wo)
    g = _silu(_B_ref(xn, B_w_gate, B_w_up, B_w_down))
    return x + s * g
```

```python
KA_X, KA_WQKV, KA_WO, KA_BX, KA_GATE, KA_UP, KA_DOWN, KA_OUT, KA_DBG, KA_WS = [8 * i for i in range(10)]

MB = 1 << 20
WS_XN = 0
WS_QK = 4 * MB
WS_V = 12 * MB
WS_H = 16 * MB
WS_O = 32 * MB
WS_PART = 36 * MB
WS_STAMP = 64 * MB
WS_SIZE = 256 * MB


class Asm:
    def __init__(self):
        self.lines = []

    def __call__(self, s=""):
        for l in s.split("\n"):
            l = l.strip()
            if l:
                self.lines.append(l if l.endswith(":") else "  " + l)

    def label(self, l):
        self.lines.append(l + ":")

    def text(self):
        return "\n".join(self.lines) + "\n"


def vr(a, n=1):
    return f"v{a}" if n == 1 else f"v[{a}:{a + n - 1}]"


def ar(a, n=1):
    return f"a{a}" if n == 1 else f"a[{a}:{a + n - 1}]"


def sr(a, n=1):
    return f"s{a}" if n == 1 else f"s[{a}:{a + n - 1}]"


def kernel_head(name):
    return f""".text
.globl {name}
.p2align 8
.type {name},@function
{name}:
"""


def kernel_desc(name, vgpr, sgpr, accum):
    return f""".section .rodata,"a"
.p2align 6
.amdhsa_kernel {name}
  .amdhsa_next_free_vgpr {vgpr}
  .amdhsa_next_free_sgpr {sgpr}
  .amdhsa_accum_offset {accum}
  .amdhsa_group_segment_fixed_size 0
  .amdhsa_kernarg_size 80
  .amdhsa_user_sgpr_count 2
  .amdhsa_user_sgpr_kernarg_segment_ptr 1
  .amdhsa_system_sgpr_workgroup_id_x 1
.end_amdhsa_kernel
"""


def interleave(main, fillers):
    out = []
    byp = {}
    for p, t in fillers:
        byp.setdefault(min(p, len(main) - 1), []).append(t)
    out += byp.get(-1, [])
    for i, m in enumerate(main):
        out.append(m)
        out += byp.get(i, [])
    return out


def srd(a, reg, base_lo, base_hi, nbytes):
    a(f"s_mov_b32 s{reg}, s{base_lo}")
    a(f"s_mov_b32 s{reg + 1}, s{base_hi}")
    a(f"s_mov_b32 s{reg + 2}, {nbytes:#x}")
    a(f"s_mov_b32 s{reg + 3}, 0x20000")

WS_S = 40 * MB
WS_FLAG = 60 * MB
FLAG_BYTES = 32768
FL_O = 0
FL_S = 16


def xor_reduce(a, op, v, t, steps=(32, 16)):
    for s in steps:
        a(f"v_mov_b32 v{t}, v{v}")
        a("s_nop 1")
        a(f"v_permlane{s}_swap_b32 v{v}, v{t}")
        a("s_nop 0")
        a(f"{op} v{v}, v{v}, v{t}")

WS_X2 = 44 * MB
```

```python
from common import *

S_TYP = 3
S_PW, S_WS, S_PX, S_POUT = 4, 6, 8, 10
SRD0, SRD1, SRD2, SRD3, SRD4, SRD5, SRD6 = 12, 16, 20, 24, 28, 32, 36
S_W, S_WM, S_WN, S_RB, S_C = 40, 41, 42, 43, 44
S_T = 56
SRD_F = 72
S_TAG, S_Q, S_XCD = 76, 78, 79
S_STAMP = 80
FLAG_BASE = 4096
K_XN, K_G1, K_O, K_S = 0, 1, 2, 3
V_L16 = 1


def stamp(a, k, cfg):
    if cfg.get("stamps"):
        a(f"s_memrealtime {sr(S_STAMP + 2 * k, 2)}")


def mk_srd(a, reg, base, off, size):
    a(f"s_add_u32 s{reg}, s{base}, {off}")
    a(f"s_addc_u32 s{reg + 1}, s{base + 1}, 0")
    a(f"s_mov_b32 s{reg + 2}, {size}")
    a(f"s_mov_b32 s{reg + 3}, 0x20000")


def flag_srd(a):
    mk_srd(a, SRD_F, S_WS, WS_FLAG, FLAG_BASE + 4 * 256 * 128)


_uid = [0]


def uid(p):
    _uid[0] += 1
    return f"{p}_{_uid[0]}"


def signal(a, kind):
    T = S_T
    l = uid("sig")
    a(f"""
    s_waitcnt vmcnt(0)
    s_barrier
    s_cmp_eq_u32 s{S_W}, 0
    s_cbranch_scc0 {l}
    """)
    flag_srd(a)
    a(f"""
    s_lshl_b32 s{T}, s{S_RB}, 5
    s_add_u32 s{T}, s{T}, s{S_Q}
    s_add_u32 s{T}, s{T}, {kind * 256}
    s_lshl_b32 s{T}, s{T}, 7
    s_add_u32 s{T}, s{T}, {FLAG_BASE}
    v_mov_b32 v16, s{S_TAG}
    v_mov_b32 v17, s{S_TAG + 1}
    v_mov_b32 v18, 0
    s_mov_b64 exec, 1
    buffer_store_dwordx2 v[16:17], v18, {sr(SRD_F, 4)}, s{T} offen sc1
    s_mov_b64 exec, -1
    """)
    a.label(l)


def poll(a, kind, gid_base_code, lane_code, barrier=True):
    T = S_T
    l = uid("poll")
    a(f"s_cmp_eq_u32 s{S_W}, 0")
    a(f"s_cbranch_scc0 {l}_done")
    flag_srd(a)
    a(gid_base_code)
    a(f"""
    s_add_u32 s{T}, s{T}, {kind * 256}
    s_lshl_b32 s{T}, s{T}, 7
    s_add_u32 s{T}, s{T}, {FLAG_BASE}
    """)
    a(lane_code)
    a(f"""
    v_lshlrev_b32 v18, 7, v18
    s_mov_b32 s{T + 1}, 0
    """)
    a.label(l)
    a(f"""
    buffer_load_dwordx2 v[16:17], v18, {sr(SRD_F, 4)}, s{T} offen sc1
    s_add_u32 s{T + 1}, s{T + 1}, 1
    s_waitcnt vmcnt(0)
    v_cmp_eq_u32 vcc, s{S_TAG}, v16
    v_cmp_eq_u32 {sr(T + 2, 2)}, s{S_TAG + 1}, v17
    s_nop 1
    s_and_b64 vcc, vcc, {sr(T + 2, 2)}
    s_cmp_eq_u64 vcc, exec
    s_cbranch_scc1 {l}_done
    s_cmp_ge_u32 s{T + 1}, 0x40000
    s_cbranch_scc1 {l}_done
    s_sleep 1
    s_branch {l}
    """)
    a.label(f"{l}_done")
    if barrier:
        a("s_barrier")
```

```python
from fz_common import *

SRD_X, SRD_G0, SRD_G1, SRD_G3, SRD_G4, SRD_O, SRD_O2 = SRD0, SRD1, SRD2, SRD3, SRD4, SRD5, SRD6
S_XOFF, S_WAOFF, S_WBOFF, S_INCA, S_INCB, S_INC2 = 45, 46, 47, 48, 49, 50
S_M0X, S_M0W, S_M02, S_LOOP = 52, 53, 54, 55

V_XD, V_WA, V_WB, V_G2, V_XR, V_WR, V_G2R = 13, 2, 3, 4, 6, 7, 11
V_XF = [16, 48]
V_WF = 80
V_WF2 = [112, 120]
V_E = 128
V_T = 188
V_PF = 190
V_ACC2 = 192
LDS_X, LDS_WM, LDS_G2, LDS_LN = 0, 65536, 131072, 147456
STR_QKV, STR_GLU = 6144, 7168
QSCALE = 0x3e8293ee


def acc(jb, i):
    n = jb * 8 + i
    return ar(4 * n, 4) if n < 64 else vr(V_ACC2 + 4 * (n - 64), 4)


def wfrag(jb, par):
    return V_WF + 4 * jb if jb < 8 else V_WF2[par] + 4 * (jb - 8)


def w_read(jb, par, slot, typ):
    r = wfrag(jb, par)
    if typ == "G":
        if jb < 8:
            base = V_WR + (jb >> 1)
            off = slot * 16384 + (8192 if jb & 1 else 0)
        else:
            base = V_G2R + (jb - 8)
            off = slot * 4096
    else:
        if jb in (4, 5):
            base = V_G2R + (jb - 4)
            off = slot * 4096
        else:
            grp, b = {0: (0, 0), 1: (0, 1), 2: (1, 0), 3: (1, 1), 6: (2, 0), 8: (2, 1), 7: (3, 0), 9: (3, 1)}[jb]
            base = V_WR + b
            off = slot * 16384 + grp * 4096
    return [f"ds_read_b64_tr_b16 {vr(r, 2)}, v{base} offset:{off}",
            f"ds_read_b64_tr_b16 {vr(r + 2, 2)}, v{base} offset:{off + 2048}"]


def x_read(i, par, slot):
    return f"ds_read_b128 {vr(V_XF[par] + 4 * i, 4)}, v{V_XR} offset:{slot * 16384 + i * 1024}"


def dma_x(slot):
    ops = []
    for i in range(4):
        setup = [f"s_add_u32 m0, s{S_M0X}, {slot * 16384}"] if i == 0 else []
        ops.append((setup, f"buffer_load_dwordx4 v{V_XD}, {sr(SRD_X, 4)}, s{S_XOFF} offen offset:{i * 1024} sc1 lds"))
    return ops, [f"s_add_u32 s{S_XOFF}, s{S_XOFF}, 16384"]


def dma_w(slot):
    ops = []
    for gi, (srd_, v, so) in enumerate([(SRD_G0, V_WA, S_WAOFF), (SRD_G1, V_WA, S_WAOFF),
                                        (SRD_G3, V_WB, S_WBOFF), (SRD_G4, V_WB, S_WBOFF)]):
        ops.append(([f"s_add_u32 m0, s{S_M0W}, {slot * 16384 + gi * 4096}"],
                    f"buffer_load_dwordx4 v{v}, {sr(srd_, 4)}, s{so} offen lds"))
    ops.append(([f"s_add_u32 m0, s{S_M02}, {slot * 4096}"], f"global_load_lds_dwordx4 {vr(V_G2, 2)}, off"))
    post = [f"s_add_u32 s{S_WAOFF}, s{S_WAOFF}, s{S_INCA}",
            f"s_add_u32 s{S_WBOFF}, s{S_WBOFF}, s{S_INCB}",
            f"v_lshl_add_u64 {vr(V_G2, 2)}, {sr(S_INC2, 2)}, 0, {vr(V_G2, 2)}"]
    return ops, post


def issue(a, ops, post):
    for setup_, ld in ops:
        for s in setup_:
            a(s)
            a("s_nop 0")
        a(ld)
    for t in post:
        a(t)


def substep(a, j, typ, cfg, first=False, do_read=True, do_dma=True, vm=18, do_wait=True, pre=()):
    par = j & 1
    swap = [typ == "Q" and jb in (4, 5) for jb in range(10)]
    mf = []
    for jb in range(10):
        for i in range(8):
            w = vr(wfrag(jb, par), 4)
            x = vr(V_XF[par] + 4 * i, 4)
            c = "0" if first else acc(jb, i)
            A, B = (x, w) if swap[jb] else (w, x)
            mf.append(f"v_mfma_f32_16x16x32_bf16 {acc(jb, i)}, {A}, {B}, {c}")
    fl = []
    for t in pre:
        fl.append((2, t))
    rs = (j + 1) & 3
    if do_read:
        for i in range(8):
            fl.append((8 * i + 1, x_read(i, 1 - par, rs)))
        extra = w_read(8, 1 - par, rs, typ) + w_read(9, 1 - par, rs, typ)
        for n, t in enumerate(extra):
            fl.append((8 * n + 3, t))
        for jb in range(8):
            r = w_read(jb, par, rs, typ)
            fl.append((8 * jb + 7, r[0]))
            fl.append((8 * jb + 8, r[1]))
    if do_dma:
        ox, px = dma_x(j & 3)
        ow, pw = dma_w(j & 3)
        ops = ox + ow
        for n, (setup, ld) in enumerate(ops):
            p = 5 + 8 * n
            for s in setup:
                fl.append((p - 1, s))
            fl.append((p, ld))
        fl.append((5 + 8 * 3 + 1, px[0]))
        for n, t in enumerate(pw):
            fl.append((5 + 8 * 8 + 1 + n, t))
    if do_wait:
        cnt = ([f"vmcnt({vm})"] if vm is not None else []) + ["lgkmcnt(0)"]
        fl.append((79, "s_waitcnt " + " ".join(cnt)))
        fl.append((79, "s_barrier"))
    fl.sort(key=lambda t: t[0])
    for l in interleave(mf, fl):
        a(l)


def entry(a, cfg):
    T = S_T
    a(f"""
    s_cmp_ge_u32 s2, 256
    s_cbranch_scc1 fz_exit
    s_load_dwordx2 {sr(T + 16, 2)}, s[0:1], {KA_X}
    s_load_dwordx2 {sr(S_WS, 2)}, s[0:1], {KA_WS}
    s_load_dwordx2 {sr(S_PW, 2)}, s[0:1], {KA_WQKV}
    s_load_dwordx4 {sr(S_PX, 4)}, s[0:1], {KA_GATE}
    """)
    stamp(a, 0, cfg)
    a(f"""
    v_lshrrev_b32 v14, 6, v0
    v_and_b32 v0, 63, v0
    v_readfirstlane_b32 s{S_W}, v14
    v_lshlrev_b32 v{V_L16}, 4, v0
    s_and_b32 s{S_XCD}, s2, 7
    s_lshr_b32 s{T + 1}, s2, 3
    s_and_b32 s{S_RB}, s{T + 1}, 7
    s_lshr_b32 s{T + 1}, s{T + 1}, 3
    s_lshl_b32 s{S_Q}, s{S_XCD}, 2
    s_add_u32 s{S_Q}, s{S_Q}, s{T + 1}
    s_lshr_b32 s{S_TYP}, s{T + 1}, 1
    s_and_b32 s{T + 1}, s{T + 1}, 1
    s_lshl_b32 s{T}, s{S_XCD}, 1
    s_add_u32 s{S_C}, s{T}, s{T + 1}
    s_lshr_b32 s{S_WM}, s{S_W}, 1
    s_and_b32 s{S_WN}, s{S_W}, 1
    """)
    a(f"""
    v_and_b32 v64, 7, v0
    v_bfe_u32 v65, v0, 3, 1
    v_lshrrev_b32 v66, 4, v0
    v_lshlrev_b32 v67, 11, v64
    v_lshlrev_b32 v68, 6, v65
    v_add_u32 v67, v67, v68
    v_lshlrev_b32 v68, 3, v66
    v_add_u32 v67, v67, v68
    s_lshl_b32 s{T}, s{S_W}, 9
    v_add_u32 v67, s{T}, v67
    s_lshl_b32 s{T}, s{S_RB}, 5
    s_add_u32 s{T}, s{T}, s{S_Q}
    s_lshl_b32 s{T}, s{T}, 14
    s_waitcnt lgkmcnt(0)
    """)
    mk_srd(a, SRD_O, T + 16, f"s{T}", 16384)
    for p in range(4):
        for t in range(2):
            a(f"buffer_load_dwordx2 {vr(32 + 4 * p + 2 * t, 2)}, v67, {sr(SRD_O, 4)}, 0 offen offset:{p * 128 + t * 32}")
    a(f"s_add_u32 s{T}, s{S_WS}, {WS_FLAG}")
    a(f"s_addc_u32 s{T + 1}, s{S_WS + 1}, 0")
    a(f"s_load_dwordx2 {sr(S_TAG, 2)}, {sr(T, 2)}, 0")
    a(f"""
    v_lshrrev_b32 v14, 3, v0
    v_and_b32 v15, 6, v14
    v_and_b32 v16, 7, v0
    v_xor_b32 v15, v15, v16
    s_lshl_b32 s{T}, s{S_W}, 3
    v_add_u32 v14, s{T}, v14
    s_lshl_b32 s{T}, s{S_W}, 12
    v_add_u32 v{V_XD}, s{T}, v{V_L16}
    s_add_u32 s{S_M0X}, s{T}, {LDS_X}
    s_lshl_b32 s{T}, s{S_W}, 10
    s_add_u32 s{S_M0W}, s{T}, {LDS_WM}
    s_add_u32 s{S_M02}, s{T}, {LDS_G2}
    """)
    WQ, GA, UP = S_PW, S_PX, S_POUT
    P0, P1, P3, P4 = T + 12, T + 14, T + 16, T + 18

    def setp(dst, src):
        a(f"s_mov_b32 s{dst}, s{src}")
        a(f"s_mov_b32 s{dst + 1}, s{src + 1}")

    def add64(dst, src, off):
        a(f"s_add_u32 s{dst}, s{src}, {off}")
        a(f"s_addc_u32 s{dst + 1}, s{src + 1}, 0")

    a(f"s_cmp_eq_u32 s{S_TYP}, 1")
    a("s_cbranch_scc1 g1_set_glu")
    a(f"s_lshl_b32 s{T}, s{S_C}, 7")
    a(f"s_add_u32 s{T + 1}, s{T}, 2048")
    a(f"s_mov_b32 s{T + 2}, s{T}")
    a(f"s_mov_b32 s{T + 3}, s{T}")
    setp(P0, WQ); setp(P1, WQ); setp(P3, GA); setp(P4, UP)
    a(f"s_add_u32 s{T + 8}, s{T}, 4096")
    add64(T + 4, WQ, f"s{T + 8}")
    add64(T + 6, T + 4, 64)
    a(f"""
    s_mov_b32 s{T + 8}, 32
    s_mov_b32 s{T + 9}, {STR_QKV}
    s_mov_b32 s{T + 10}, {STR_GLU}
    s_mov_b32 s{T + 11}, {STR_QKV}
    s_branch g1_set_done
    """)
    a.label("g1_set_glu")
    a(f"""
    s_mul_i32 s{T + 10}, s{S_C}, 320
    s_add_u32 s{T + 10}, s{T + 10}, 2048
    s_and_b32 s{T + 9}, s{S_C}, 1
    s_lshl_b32 s{T + 11}, s{T + 9}, 6
    s_add_u32 s{T}, s{T + 10}, s{T + 11}
    s_add_u32 s{T + 1}, s{T}, 128
    s_mov_b32 s{T + 2}, s{T}
    s_mov_b32 s{T + 3}, s{T + 1}
    s_cmp_eq_u32 s{T + 9}, 0
    s_cselect_b32 s{T + 11}, 256, 0
    s_add_u32 s{T + 8}, s{T + 10}, s{T + 11}
    """)
    setp(P0, GA); setp(P1, GA); setp(P3, UP); setp(P4, UP)
    add64(T + 4, GA, f"s{T + 8}")
    add64(T + 6, UP, f"s{T + 8}")
    a(f"""
    s_mov_b32 s{T + 8}, 32
    s_mov_b32 s{T + 9}, {STR_GLU}
    s_mov_b32 s{T + 10}, {STR_GLU}
    s_mov_b32 s{T + 11}, {STR_GLU}
    """)
    a.label("g1_set_done")
    for srd_, p, co, st in ((SRD_G0, P0, T, T + 9), (SRD_G1, P1, T + 1, T + 9),
                            (SRD_G3, P3, T + 2, T + 10), (SRD_G4, P4, T + 3, T + 10)):
        a(f"""
        s_add_u32 s{srd_}, s{p}, s{co}
        s_addc_u32 s{srd_ + 1}, s{p + 1}, 0
        s_lshl_b32 s{srd_ + 2}, s{st}, 10
        s_sub_u32 s{srd_ + 2}, s{srd_ + 2}, s{co}
        s_mov_b32 s{srd_ + 3}, 0x20000
        """)
    a(f"""
    s_lshl_b32 s{S_INCA}, s{T + 9}, 5
    s_lshl_b32 s{S_INCB}, s{T + 10}, 5
    s_lshl_b32 s{S_INC2}, s{T + 11}, 5
    s_mov_b32 s{S_INC2 + 1}, 0
    s_mov_b32 s{S_XOFF}, 0
    s_mov_b32 s{S_WAOFF}, 0
    s_mov_b32 s{S_WBOFF}, 0
    v_lshlrev_b32 v16, 4, v15
    v_mul_lo_u32 v{V_WA}, v14, s{T + 9}
    v_add_u32 v{V_WA}, v{V_WA}, v16
    v_mul_lo_u32 v{V_WB}, v14, s{T + 10}
    v_add_u32 v{V_WB}, v{V_WB}, v16
    v_mul_lo_u32 v14, v14, s{T + 11}
    v_and_b32 v16, 1, v15
    v_lshlrev_b32 v16, 4, v16
    v_add_u32 v14, v14, v16
    v_bfe_u32 v16, v15, 1, 1
    v_mul_lo_u32 v16, v16, s{T + 8}
    v_add_u32 v14, v14, v16
    v_cmp_gt_u32 vcc, 4, v15
    v_mov_b32 v{V_G2}, s{T + 6}
    v_mov_b32 v16, s{T + 4}
    v_cndmask_b32 v{V_G2}, v{V_G2}, v16, vcc
    v_mov_b32 v{V_G2 + 1}, s{T + 7}
    v_mov_b32 v16, s{T + 5}
    v_cndmask_b32 v{V_G2 + 1}, v{V_G2 + 1}, v16, vcc
    v_add_co_u32 v{V_G2}, vcc, v{V_G2}, v14
    s_nop 1
    v_addc_co_u32 v{V_G2 + 1}, vcc, 0, v{V_G2 + 1}, vcc
    """)
    for s in range(4):
        issue(a, *dma_w(s))
    a(f"""
    s_cmp_eq_u32 s{S_TYP}, 0
    s_cselect_b32 s{T}, {KA_WO}, {KA_DOWN}
    s_load_dwordx2 {sr(S_PW, 2)}, s[0:1], s{T}
    s_load_dwordx2 {sr(S_PX, 2)}, s[0:1], {KA_X}
    s_load_dwordx2 {sr(S_POUT, 2)}, s[0:1], {KA_OUT}
    s_load_dwordx2 {sr(T + 12, 2)}, s[0:1], {KA_DOWN}
    s_load_dwordx2 {sr(T + 14, 2)}, s[0:1], {KA_WO}
    """)
    a(f"s_lshl_b32 s{T}, s{S_RB}, 19")
    mk_srd(a, SRD_X, S_WS, f"s{T}", 512 * 1024)


def read_bases(a):
    T = S_T
    a(f"""
    s_lshl_b32 s{T}, s{S_WM}, 13
    v_add_u32 v{V_XR}, s{T}, v{V_L16}
    v_lshrrev_b32 v14, 2, v0
    v_and_b32 v15, 6, v14
    v_lshlrev_b32 v14, 7, v14
    v_bfe_u32 v16, v0, 1, 1
    v_lshlrev_b32 v16, 4, v16
    v_add_u32 v14, v14, v16
    v_and_b32 v16, 1, v0
    v_lshlrev_b32 v16, 3, v16
    v_add_u32 v14, v14, v16
    s_cmp_eq_u32 s{S_TYP}, 1
    s_cbranch_scc1 g1_rb_glu
    """)
    for n in range(2):
        a(f"""
        s_lshl_b32 s{T}, s{S_WN}, 1
        s_add_u32 s{T}, s{T}, {n}
        s_lshl_b32 s{T}, s{T}, 1
        v_xor_b32 v16, s{T}, v15
        v_lshlrev_b32 v16, 4, v16
        v_add_u32 v16, v16, v14
        v_add_u32 v{V_WR + n}, {LDS_WM}, v16
        v_add_u32 v{V_G2R + n}, {LDS_G2}, v16
        """)
    a(f"""
    v_mov_b32 v{V_WR + 2}, v{V_WR}
    v_mov_b32 v{V_WR + 3}, v{V_WR}
    s_branch g1_rb_done
    """)
    a.label("g1_rb_glu")
    a(f"s_lshl_b32 s{T}, s{S_WN}, 12")
    a(f"s_add_u32 s{T}, s{T}, {LDS_WM}")
    for b in range(4):
        a(f"""
        v_xor_b32 v16, {2 * b}, v15
        v_lshlrev_b32 v16, 4, v16
        v_add_u32 v16, v16, v14
        v_add_u32 v{V_WR + b}, s{T}, v16
        """)
    for n in range(2):
        a(f"""
        s_add_u32 s{T}, s{S_WN}, {2 * n}
        s_lshl_b32 s{T}, s{T}, 1
        v_xor_b32 v16, s{T}, v15
        v_lshlrev_b32 v16, 4, v16
        v_add_u32 v16, v16, v14
        v_add_u32 v{V_G2R + n}, {LDS_G2}, v16
        """)
    a.label("g1_rb_done")


def layernorm(a, cfg):
    T = S_T
    a(f"""
    s_and_b32 s{T}, s{S_Q}, 1
    s_lshl_b32 s{T}, s{T}, 3
    v_add_u32 v68, s{T}, v64
    v_lshlrev_b32 v68, 4, v68
    v_lshlrev_b32 v69, 8, v66
    v_add_u32 v68, v68, v69
    v_lshlrev_b32 v69, 14, v65
    v_add_u32 v68, v68, v69
    v_lshlrev_b32 v70, 2, v64
    v_add_u32 v70, {LDS_LN}, v70
    s_lshl_b32 s{T}, s{S_W}, 5
    v_add_u32 v71, s{T}, v70
    s_lshl_b32 s{T + 4}, s{S_RB}, 5
    s_lshl_b32 s{T}, s{S_W}, 3
    s_add_u32 s{T + 4}, s{T + 4}, s{T}
    s_lshl_b32 s{T + 4}, s{T + 4}, 14
    s_lshr_b32 s{T}, s{S_Q}, 1
    s_lshl_b32 s{T}, s{T}, 10
    s_add_u32 s{T + 4}, s{T + 4}, s{T}
    """)
    mk_srd(a, SRD_O, S_WS, WS_XN, 4 * MB)
    a("s_waitcnt vmcnt(20)")
    for k in range(16):
        a(f"v_lshlrev_b32 v{80 + 2 * k}, 16, v{32 + k}")
        a(f"v_and_b32 v{81 + 2 * k}, 0xffff0000, v{32 + k}")

    def reduce_all(off):
        a("v_add_f32 v72, v72, v73")
        a("v_add_f32 v74, v74, v75")
        a("v_add_f32 v72, v72, v74")
        a("s_nop 1")
        a("v_add_f32_dpp v72, v72, v72 row_ror:8 row_mask:0xf bank_mask:0xf")
        xor_reduce(a, "v_add_f32", 72, 76, steps=(32, 16))
        a(f"""
        ds_write_b32 v71, v72 offset:{off}
        s_waitcnt lgkmcnt(0)
        s_barrier
        ds_read_b32 v72, v70 offset:{off}
        ds_read_b32 v73, v70 offset:{off + 32}
        ds_read_b32 v74, v70 offset:{off + 64}
        ds_read_b32 v75, v70 offset:{off + 96}
        s_waitcnt lgkmcnt(0)
        v_add_f32 v72, v72, v73
        v_add_f32 v74, v74, v75
        v_add_f32 v72, v72, v74
        """)
    for q in range(4):
        a(f"v_add_f32 v{72 + q}, v{80 + q}, v{84 + q}")
    for k in range(8, 32, 4):
        for q in range(4):
            a(f"v_add_f32 v{72 + q}, v{72 + q}, v{80 + k + q}")
    reduce_all(0)
    a("v_mul_f32 v77, 0x3a800000, v72")
    for q in range(4):
        a(f"v_sub_f32 v78, v{80 + q}, v77")
        a(f"v_mul_f32 v{72 + q}, v78, v78")
    for k in range(4, 32):
        a(f"v_sub_f32 v{78 + (k & 1)}, v{80 + k}, v77")
        a(f"v_fmac_f32 v{72 + (k & 3)}, v{78 + (k & 1)}, v{78 + (k & 1)}")
    reduce_all(128)
    a("""
    v_mul_f32 v72, 0x3a800000, v72
    v_cvt_pk_bf16_f32 v72, v72, v77
    v_and_b32 v77, 0xffff0000, v72
    v_lshlrev_b32 v72, 16, v72
    v_add_f32 v72, 0x3727c5ac, v72
    v_cvt_pk_bf16_f32 v72, v72, v72
    v_lshlrev_b32 v72, 16, v72
    v_sqrt_f32 v72, v72
    s_nop 0
    v_cvt_pk_bf16_f32 v72, v72, v72
    v_lshlrev_b32 v72, 16, v72
    v_rcp_f32 v78, v72
    """)
    for p in range(4):
        for k in range(4):
            e = 80 + 8 * p + 2 * k
            a(f"v_sub_f32 v{e}, v{e}, v77")
            a(f"v_sub_f32 v{e + 1}, v{e + 1}, v77")
            a(f"v_cvt_pk_bf16_f32 v79, v{e}, v{e + 1}")
            a(f"v_lshlrev_b32 v{e}, 16, v79")
            a(f"v_and_b32 v{e + 1}, 0xffff0000, v79")
            a(f"v_mul_f32 v{e}, v{e}, v78")
            a(f"v_mul_f32 v{e + 1}, v{e + 1}, v78")
            a(f"v_cvt_pk_bf16_f32 v{32 + 4 * p + k}, v{e}, v{e + 1}")
        a(f"s_add_u32 s{T + 5}, s{T + 4}, {p * 32768}")
        a(f"buffer_store_dwordx4 {vr(32 + 4 * p, 4)}, v68, {sr(SRD_O, 4)}, s{T + 5} offen sc1")
    a(f"s_add_u32 s{S_TAG}, s{S_TAG}, 1")
    signal(a, K_XN)


def prefetch_setup(a):
    T = S_T
    a(f"s_mul_i32 s{T}, s2, 28672")
    mk_srd(a, SRD_O, T + 12, f"s{T}", 28672)
    a(f"s_lshl_b32 s{T}, s2, 13")
    mk_srd(a, SRD_O2, T + 14, f"s{T}", 8192)
    a(f"""
    s_lshl_b32 s{T}, s{S_W}, 13
    v_lshlrev_b32 v{V_PF}, 7, v0
    v_add_u32 v{V_PF}, s{T}, v{V_PF}
    """)


def mainloop(a, typ, cfg):
    a(f"s_mov_b32 s{S_LOOP}, 0")
    pf = cfg.get("pf", 1)
    pre = {1: [f"buffer_load_dword v{V_PF + 1}, v{V_PF}, {sr(SRD_O, 4)}, 0 offen"],
           2: [f"buffer_load_dword v{V_PF + 1}, v{V_PF}, {sr(SRD_O2, 4)}, 0 offen"]} if pf else {}
    vms = [18, 19, 20, 19] if pf else [18] * 4
    for j in range(4):
        substep(a, j, typ, cfg, first=(j == 0), vm=vms[j], pre=pre.get(j, ()))
    l = f"g1_loop_{typ}"
    a.label(l)
    for j in range(4):
        substep(a, j, typ, cfg)
    a(f"""
    s_add_u32 s{S_LOOP}, s{S_LOOP}, 1
    s_cmp_lt_u32 s{S_LOOP}, 6
    s_cbranch_scc1 {l}
    """)
    substep(a, 0, typ, cfg, do_dma=False, vm=9)
    substep(a, 1, typ, cfg, do_dma=False, vm=0)
    substep(a, 2, typ, cfg, do_dma=False, vm=None)
    substep(a, 3, typ, cfg, do_dma=False, do_read=False, do_wait=False)


def rd(a, dst, jb, i, r):
    n = jb * 8 + i
    if n < 64:
        a(f"v_accvgpr_read_b32 v{dst}, a{4 * n + r}")
        return f"v{dst}"
    return f"v{V_ACC2 + 4 * (n - 64) + r}"


class Rot:
    def __init__(self):
        self.n = 0

    def next(self):
        b = V_E + 12 * (self.n % 5)
        self.n += 1
        return b


def pack8(a, lo, hi, base):
    a(f"v_cvt_pk_bf16_f32 v{base}, {lo[0]}, {lo[1]}")
    a(f"v_cvt_pk_bf16_f32 v{base + 1}, {lo[2]}, {lo[3]}")
    a(f"v_cvt_pk_bf16_f32 v{base + 2}, {hi[0]}, {hi[1]}")
    a(f"v_cvt_pk_bf16_f32 v{base + 3}, {hi[2]}, {hi[3]}")


def epi_heads(a, rot, j0, j1, scale=False):
    T = S_T
    a(f"s_add_u32 s{T + 1}, s{T}, 4096")
    for i in range(8):
        b = rot.next()
        lo = [rd(a, b + 4 + r, j0, i, r) for r in range(4)]
        hi = [rd(a, b + 8 + r, j1, i, r) for r in range(4)]
        if scale:
            for r, x in enumerate(lo + hi):
                a(f"v_mul_f32 v{b + 4 + r}, {QSCALE:#x}, {x}")
            lo = [f"v{b + 4 + r}" for r in range(4)]
            hi = [f"v{b + 8 + r}" for r in range(4)]
        pack8(a, lo, hi, b)
        so = T if i < 4 else T + 1
        a(f"buffer_store_dwordx4 {vr(b, 4)}, v{V_T}, {sr(SRD_O, 4)}, s{so} offen offset:{(i & 3) * 1024} sc1")


def epi_v(a, rot, jb):
    T = S_T
    a(f"s_add_u32 s{T + 1}, s{T}, 4096")
    for u in range(4):
        b = rot.next()
        lo = [rd(a, b + 4 + r, jb, 2 * u, r) for r in range(4)]
        hi = [rd(a, b + 8 + r, jb, 2 * u + 1, r) for r in range(4)]
        pack8(a, lo, hi, b)
        so = T if u < 2 else T + 1
        a(f"buffer_store_dwordx4 {vr(b, 4)}, v{V_T}, {sr(SRD_O2, 4)}, s{so} offen offset:{(u & 1) * 2048} sc1")


def epi_glu(a, rot, pairs):
    T = S_T
    a(f"s_add_u32 s{T + 1}, s{T}, 4096")
    for i in range(8):
        b = rot.next()
        for t, (g, u) in enumerate(pairs):
            xs = [(rd(a, b + 4 + r, g, i, r), rd(a, b + 8 + r, u, i, r)) for r in range(4)]
            for r in range(4):
                a(f"v_mul_f32 v{b + 4 + r}, {xs[r][0]}, {xs[r][1]}")
            a(f"v_cvt_pk_bf16_f32 v{b + 2 * t}, v{b + 4}, v{b + 5}")
            a(f"v_cvt_pk_bf16_f32 v{b + 2 * t + 1}, v{b + 6}, v{b + 7}")
        so = T if i < 4 else T + 1
        if len(pairs) == 2:
            a(f"buffer_store_dwordx4 {vr(b, 4)}, v{V_T}, {sr(SRD_O, 4)}, s{so} offen offset:{(i & 3) * 1024} sc1")
        else:
            a(f"buffer_store_dwordx2 {vr(b, 2)}, v{V_T + 1}, {sr(SRD_O, 4)}, s{so} offen offset:{(i & 3) * 1024} sc1")


def epilogue(a, typ, cfg):
    T = S_T
    a(f"v_mov_b32 v{V_T}, v{V_L16}")
    a(f"s_lshl_b32 s{T + 2}, s{S_WN}, 3")
    a(f"v_add_u32 v{V_T + 1}, s{T + 2}, v{V_T}")
    a(f"s_lshl_b32 s{T + 4}, s{S_RB}, 4")
    a(f"s_lshl_b32 s{T + 5}, s{S_WM}, 3")
    a(f"s_add_u32 s{T + 4}, s{T + 4}, s{T + 5}")

    def head_off(head_reg, add=0):
        a(f"s_lshl_b32 s{T}, s{head_reg}, 17")
        a(f"s_lshl_b32 s{T + 5}, s{T + 4}, 10")
        a(f"s_add_u32 s{T}, s{T}, s{T + 5}")
        if add:
            a(f"s_add_u32 s{T}, s{T}, {add}")

    def h_off(stage_reg, add):
        a(f"s_lshr_b32 s{T}, s{T + 4}, 3")
        a(f"s_mul_i32 s{T}, s{T}, 112")
        a(f"s_add_u32 s{T}, s{T}, s{stage_reg}")
        if add:
            a(f"s_add_u32 s{T}, s{T}, {add}")
        a(f"s_lshl_b32 s{T}, s{T}, 13")

    GA, GB, G2 = T + 6, T + 7, T + 8
    rot = Rot()
    if typ == "Q":
        a(f"s_lshl_b32 s{GA}, s{S_C}, 1")
        a(f"s_add_u32 s{GA}, s{GA}, s{S_WN}")
        mk_srd(a, SRD_O, S_WS, WS_QK, 8 * MB)
        mk_srd(a, SRD_O2, S_WS, WS_V, 4 * MB)
        head_off(GA, 4 * MB)
        epi_heads(a, rot, 2, 3)
        head_off(GA)
        epi_v(a, rot, 4)
        head_off(GA, 1024)
        epi_v(a, rot, 5)
        head_off(GA)
        epi_heads(a, rot, 0, 1, scale=True)
        mk_srd(a, SRD_O, S_WS, WS_H, 2048 * 3584 * 2)
        h_off(GA, 0)
        epi_glu(a, rot, [(6, 7), (8, 9)])
    else:
        mk_srd(a, SRD_O, S_WS, WS_H, 2048 * 3584 * 2)
        a(f"""
        s_mul_i32 s{G2}, s{S_C}, 5
        s_add_u32 s{G2}, s{G2}, 32
        s_and_b32 s{GB}, s{S_C}, 1
        s_add_u32 s{GA}, s{G2}, s{GB}
        s_lshl_b32 s{T + 9}, s{S_WN}, 1
        s_add_u32 s{GA}, s{GA}, s{T + 9}
        s_cmp_eq_u32 s{GB}, 0
        s_cselect_b32 s{T + 9}, 4, 0
        s_add_u32 s{G2}, s{G2}, s{T + 9}
        """)
        h_off(GA, 0)
        epi_glu(a, rot, [(0, 1), (2, 3)])
        h_off(GA, 1)
        epi_glu(a, rot, [(4, 5), (6, 7)])
        h_off(G2, 0)
        epi_glu(a, rot, [(8, 9)])
```

```python
from fz_common import *

SRD_A, SRD_W0, SRD_W1, SRD_P, SRD_R, SRD_T = SRD0, SRD1, SRD2, SRD3, SRD4, SRD5
S_RB128, S_CT, S_TILE = 45, 46, 47
S_XOFF, S_WOA, S_WOB, S_M0X, S_M0W, S_LOOP, S_NLOOP = 48, 49, 50, 51, 52, 53, 54
NEG = 0xf149f2ca

A_K, A_V, A_Q = 0, 96, 192
V_S = [16, 84]
V_P = 152
V_O, V_L = 188, 196
V_M = 200
V_PK = 216
V_MASK = 224
V_ONE = 240


def merge(valu, mfma, start, end):
    n = len(mfma)
    return [(start + (k * (end - start)) // max(1, n), m) for k, m in enumerate(mfma)]


def qk_mfmas(i):
    S = V_S[i & 1]
    out = []
    for n in range(i, i + 17):
        if n == i:
            c = vr(V_MASK + 8, 4)
        elif n == i + 16:
            c = vr(V_MASK + 12, 4)
        elif n < 8:
            c = vr(V_MASK, 4)
        elif n < 16:
            c = vr(V_MASK + 4, 4)
        else:
            c = "0"
        out.append(f"v_mfma_f32_16x16x32_bf16 {vr(S + 4 * (n - i), 4)}, {ar(A_K + 4 * n, 4)}, {ar(A_Q + 4 * i, 4)}, {c}")
    return out


def pv_mfmas(i):
    out = []
    u0 = i // 2
    for k in range(9):
        p = vr(V_P + 4 * k, 4)
        u = u0 + k
        c0 = "0" if k == 0 else vr(V_O, 4)
        c1 = "0" if k == 0 else vr(V_O + 4, 4)
        c2 = "0" if k == 0 else vr(V_L, 4)
        out.append(f"v_mfma_f32_16x16x32_bf16 {vr(V_O, 4)}, {ar(A_V + 8 * u, 4)}, {p}, {c0}")
        out.append(f"v_mfma_f32_16x16x32_bf16 {vr(V_O + 4, 4)}, {ar(A_V + 8 * u + 4, 4)}, {p}, {c1}")
        out.append(f"v_mfma_f32_16x16x32_bf16 {vr(V_L, 4)}, {vr(V_ONE, 4)}, {p}, {c2}")
    return out


def softmax_valu(i):
    S = V_S[i & 1]
    m0, m1, t = V_M, V_M + 1, V_M + 2
    ch = [list(range(S, S + 34)), list(range(S + 34, S + 68))]
    accs = [m0, m1]
    mx = [f"v_max3_f32 v{accs[k]}, v{ch[k][0]}, v{ch[k][1]}, v{ch[k][2]}" for k in range(2)]
    for st in range(3, 33, 2):
        for k in range(2):
            mx.append(f"v_max3_f32 v{accs[k]}, v{accs[k]}, v{ch[k][st]}, v{ch[k][st + 1]}")
    mx.append(f"v_max3_f32 v{m0}, v{m0}, v{ch[0][33]}, v{ch[1][33]}")
    mx.append(f"v_max_f32 v{m0}, v{m0}, v{m1}")
    for s in (32, 16):
        mx.append(f"v_mov_b32 v{t}, v{m0}")
        mx.append("s_nop 1")
        mx.append(f"v_permlane{s}_swap_b32 v{m0}, v{t}")
        mx.append("s_nop 0")
        mx.append(f"v_max_f32 v{m0}, v{m0}, v{t}")
    ex = []
    for k in range(0, 68, 4):
        for r in range(4):
            ex.append(f"v_sub_f32 v{S + k + r}, v{S + k + r}, v{m0}")
        for r in range(4):
            ex.append(f"v_exp_f32 v{S + k + r}, v{S + k + r}")
    sh = i & 1
    z = V_P if sh else V_P + 34
    cv = [f"v_mov_b32 v{z}, 0", f"v_mov_b32 v{z + 1}, 0"]
    for n in range(17):
        pos = n + sh
        p = V_P + 4 * (pos >> 1) + 2 * (pos & 1)
        cv.append(f"v_cvt_pk_bf16_f32 v{p}, v{S + 4 * n}, v{S + 4 * n + 1}")
        cv.append(f"v_cvt_pk_bf16_f32 v{p + 1}, v{S + 4 * n + 2}, v{S + 4 * n + 3}")
    return mx, ex, cv


def finalize(i):
    r = V_M + 4
    pk = V_PK + 4 * (i & 1)
    out = [f"v_rcp_f32 v{r}, v{V_L}", "s_nop 0"]
    for k in range(8):
        out.append(f"v_mul_f32 v{V_M + 6 + k}, v{V_O + k}, v{r}")
    for k in range(4):
        out.append(f"v_cvt_pk_bf16_f32 v{pk + k}, v{V_M + 6 + 2 * k}, v{V_M + 7 + 2 * k}")
    so = S_T + 4 if i < 4 else S_T + 5
    out.append(f"buffer_store_dwordx4 {vr(pk, 4)}, v{V_L16}, {sr(SRD_T, 4)}, s{so} offen offset:{(i & 3) * 1024} sc1")
    return out


def attention(a, cfg):
    T = S_T
    a(f"""
    s_lshl_b32 s{T}, s{S_C}, 1
    s_add_u32 s{T}, s{T}, s{S_WN}
    s_lshl_b32 s{T + 1}, s{S_RB}, 4
    s_lshl_b32 s{T + 2}, s{S_WM}, 3
    s_add_u32 s{T + 1}, s{T + 1}, s{T + 2}
    s_lshl_b32 s{T + 3}, s{T}, 17
    """)
    mk_srd(a, SRD_P, S_WS, WS_QK, 4 * MB)
    mk_srd(a, SRD_R, S_WS, WS_QK + 4 * MB, 4 * MB)
    mk_srd(a, SRD_A, S_WS, WS_V, 4 * MB)
    mk_srd(a, SRD_T, S_WS, WS_O, 4 * MB)
    a(f"s_lshl_b32 s{T + 6}, s{T + 1}, 10")
    a(f"s_add_u32 s{T + 6}, s{T + 6}, s{T + 3}")
    a(f"s_add_u32 s{T + 7}, s{T + 6}, 4096")
    for i in range(8):
        so = T + 6 if i < 4 else T + 7
        a(f"buffer_load_dwordx4 {ar(A_Q + 4 * i, 4)}, v{V_L16}, {sr(SRD_P, 4)}, s{so} offen offset:{(i & 3) * 1024} sc1")
    G = T + 8
    for j in range(6):
        a(f"s_add_i32 s{G + j}, s{T + 1}, {4 * j - 16}")
        a(f"s_max_i32 s{G + j}, s{G + j}, 0")
        a(f"s_lshl_b32 s{G + j}, s{G + j}, 10")
        a(f"s_add_u32 s{G + j}, s{G + j}, s{T + 3}")

    def kload(j):
        for k in range(4):
            a(f"buffer_load_dwordx4 {ar(A_K + 4 * (4 * j + k), 4)}, v{V_L16}, {sr(SRD_R, 4)}, s{G + j} offen offset:{k * 1024} sc1")

    def vload(j):
        for k in range(4):
            a(f"buffer_load_dwordx4 {ar(A_V + 4 * (4 * j + k), 4)}, v{V_L16}, {sr(SRD_A, 4)}, s{G + j} offen offset:{k * 1024} sc1")
    for j in range(5): kload(j)
    for j in range(5): vload(j)
    kload(5); vload(5)
    a(f"""
    s_lshr_b32 s{T + 4}, s{T + 1}, 3
    s_lshl_b32 s{T + 4}, s{T + 4}, 5
    s_add_u32 s{T + 4}, s{T + 4}, s{T}
    s_lshl_b32 s{T + 4}, s{T + 4}, 13
    s_add_u32 s{T + 5}, s{T + 4}, 4096
    s_cmp_lt_u32 s{T + 1}, 16
    s_cselect_b32 s{T + 6}, {NEG:#x}, 0
    s_cmp_lt_u32 s{T + 1}, 8
    s_cselect_b32 s{T + 7}, {NEG:#x}, 0
    v_and_b32 v8, 15, v0
    v_lshrrev_b32 v9, 4, v0
    v_lshlrev_b32 v9, 2, v9
    v_mov_b32 v10, {NEG:#x}
    v_mov_b32 v11, s{T + 6}
    v_mov_b32 v13, 0
    """)
    for r in range(4):
        a(f"v_mov_b32 v{V_MASK + r}, s{T + 6}")
        a(f"v_mov_b32 v{V_MASK + 4 + r}, s{T + 7}")
        a(f"v_add_u32 v12, {r}, v9")
        a(f"v_cmp_gt_u32 vcc, v12, v8")
        a(f"v_mov_b32 v{V_ONE + r}, 0x3f803f80")
        a(f"s_nop 0")
        a(f"v_cndmask_b32 v{V_MASK + 8 + r}, v10, v11, vcc")
        a(f"v_cndmask_b32 v{V_MASK + 12 + r}, v13, v10, vcc")
    a("s_waitcnt vmcnt(28)")
    stamp(a, 5, cfg)
    for m in qk_mfmas(0):
        a(m)
    a("s_nop 7")
    for i in range(9):
        if i == 1:
            a("s_waitcnt vmcnt(0)")
        mf = []
        if i >= 1: mf += pv_mfmas(i - 1)
        if i + 1 < 8: mf += qk_mfmas(i + 1)
        if i < 8:
            mx, ex, cv = softmax_valu(i)
            valu = mx + ex
            for l in interleave(valu, merge(valu, mf, 0, len(valu) - 12)): a(l)
            if i >= 1:
                for l in finalize(i - 1): a(l)
            for l in cv: a(l)
        else:
            a("s_nop 1")
            for l in mf: a(l)
            a("s_nop 7")
            for l in finalize(i - 1): a(l)


V_XD, V_WD = 2, 3
V_XR = [4, 5]
V_WR = [6, 10]
G_XF = [16, 48]
G_WF = [80, 112]
V_X = 144
V_SS = 176
V_E = 208
V_XA, V_OA = 248, 249
LDS_W = 81920


def g_xread(par, slot):
    out = []
    for t in range(2):
        for i in range(4):
            base, so = (V_XR[0], slot * 16384) if slot < 4 else (V_XR[1], 0)
            out.append(f"ds_read_b128 {vr(G_XF[par] + 16 * t + 4 * i, 4)}, v{base} offset:{so + t * 8192 + i * 1024}")
    return out


def g_wread(par, slot):
    out = []
    for t in range(2):
        for jb in range(4):
            base, so = (V_WR[0] + jb, slot * 16384) if slot < 4 else (V_WR[1] + jb, 0)
            r = G_WF[par] + 16 * t + 4 * jb
            for u in range(2):
                out.append(f"ds_read_b64_tr_b16 {vr(r + 2 * u, 2)}, v{base} offset:{so + t * 4096 + u * 2048}")
    return out


def g_dma_x(slot):
    ops = []
    for i in range(4):
        setup = [f"s_add_u32 m0, s{S_M0X}, {slot * 16384}"] if i == 0 else []
        ops.append((setup, f"buffer_load_dwordx4 v{V_XD}, {sr(SRD_A, 4)}, s{S_XOFF} offen offset:{i * 1024} sc1 lds"))
    return ops, [f"s_add_u32 s{S_XOFF}, s{S_XOFF}, 16384"]


def g_dma_w(slot):
    ops = []
    for G, srd_ in enumerate((SRD_W0, SRD_W1)):
        for pp, so in enumerate((S_WOA, S_WOB)):
            ops.append(([f"s_add_u32 m0, s{S_M0W}, {slot * 16384 + G * 8192 + pp * 1024}"],
                        f"buffer_load_dwordx4 v{V_WD}, {sr(srd_, 4)}, s{so} offen lds"))
    return ops, [f"s_add_u32 s{S_WOA}, s{S_WOA}, {64 * 2048}", f"s_add_u32 s{S_WOB}, s{S_WOB}, {64 * 2048}"]


def issue(a, ops, post):
    for setup_, ld in ops:
        for s in setup_:
            a(s)
            a("s_nop 0")
        a(ld)
    for t in post:
        a(t)


def g_substep(a, j, cfg, do_read=True, do_dma=True, vm=24, do_wait=True):
    par = j & 1
    mf = []
    for t in range(2):
        for jb in range(4):
            for i in range(4):
                acc = ar(4 * (jb * 4 + i), 4)
                mf.append(f"v_mfma_f32_16x16x32_bf16 {acc}, {vr(G_WF[par] + 16 * t + 4 * jb, 4)}, {vr(G_XF[par] + 16 * t + 4 * i, 4)}, {acc}")
    fl = []
    if do_read:
        rs = (j + 1) % 5
        xr, wr = g_xread(1 - par, rs), g_wread(1 - par, rs)
        rds = []
        for k in range(8):
            rds += [xr[k], wr[2 * k], wr[2 * k + 1]]
        for k, t in enumerate(rds):
            fl.append((k, t))
    if do_dma:
        ox, px = g_dma_x(j % 5)
        ow, pw = g_dma_w(j % 5)
        for n, (setup, ld) in enumerate(ox + ow):
            p = 1 + 3 * n + (0 if n < 4 else 1)
            for s in setup:
                fl.append((p - 1, s))
            fl.append((p, ld))
        fl.append((12, px[0]))
        for t in pw:
            fl.append((28, t))
    if do_wait:
        cnt = ([f"vmcnt({vm})"] if vm is not None else []) + ["lgkmcnt(0)"]
        fl.append((31, "s_waitcnt " + " ".join(cnt)))
        fl.append((31, "s_barrier"))
    fl.sort(key=lambda t: t[0])
    for l in interleave(mf, fl):
        a(l)


def tile_ids(a):
    T = S_T
    a(f"""
    s_lshl_b32 s{T + 2}, s{S_RB}, 1
    s_and_b32 s{T + 3}, s{S_C}, 1
    s_add_u32 s{T + 2}, s{T + 2}, s{T + 3}
    s_lshr_b32 s{T + 3}, s{S_XCD}, 1
    s_lshl_b32 s{T + 3}, s{T + 3}, 2
    s_and_b32 s{T + 4}, s{T + 2}, 3
    s_add_u32 s{S_RB128}, s{T + 3}, s{T + 4}
    s_and_b32 s{T + 3}, s{S_XCD}, 1
    s_lshl_b32 s{T + 3}, s{T + 3}, 2
    s_lshr_b32 s{T + 4}, s{T + 2}, 2
    s_add_u32 s{S_CT}, s{T + 3}, s{T + 4}
    s_lshl_b32 s{S_TILE}, s{S_RB128}, 3
    s_add_u32 s{S_TILE}, s{S_TILE}, s{S_CT}
    """)


def gemm_w_prologue(a, krows):
    T = S_T
    a(f"""
    s_lshl_b32 s{T + 2}, s{S_CT}, 8
    s_add_u32 s{SRD_W0}, s{S_PW}, s{T + 2}
    s_addc_u32 s{SRD_W0 + 1}, s{S_PW + 1}, 0
    s_sub_u32 s{SRD_W0 + 2}, {krows * 2048}, s{T + 2}
    s_mov_b32 s{SRD_W0 + 3}, 0x20000
    s_add_u32 s{SRD_W1}, s{SRD_W0}, 128
    s_addc_u32 s{SRD_W1 + 1}, s{SRD_W0 + 1}, 0
    s_sub_u32 s{SRD_W1 + 2}, s{SRD_W0 + 2}, 128
    s_mov_b32 s{SRD_W1 + 3}, 0x20000
    s_lshl_b32 s{T}, s{S_W}, 11
    s_add_u32 s{S_M0W}, s{T}, {LDS_W}
    v_lshrrev_b32 v16, 3, v0
    v_and_b32 v17, 6, v16
    v_and_b32 v18, 7, v0
    v_xor_b32 v17, v17, v18
    s_lshl_b32 s{T}, s{S_W}, 4
    v_add_u32 v16, s{T}, v16
    v_lshlrev_b32 v16, 11, v16
    v_lshlrev_b32 v17, 4, v17
    v_add_u32 v{V_WD}, v16, v17
    s_mov_b32 s{S_WOA}, 0
    s_mov_b32 s{S_WOB}, 16384
    """)
    for s in range(5):
        issue(a, *g_dma_w(s))


def gemm_lane_setup(a):
    T = S_T
    a(f"""
    s_lshl_b32 s{T}, s{S_W}, 12
    v_add_u32 v{V_XD}, s{T}, v{V_L16}
    s_mov_b32 s{S_M0X}, s{T}
    s_lshl_b32 s{T}, s{S_WM}, 12
    v_add_u32 v{V_XR[0]}, s{T}, v{V_L16}
    v_add_u32 v{V_XR[1]}, 0x10000, v{V_XR[0]}
    v_lshrrev_b32 v16, 2, v0
    v_and_b32 v17, 6, v16
    v_lshlrev_b32 v16, 7, v16
    v_bfe_u32 v18, v0, 1, 1
    v_lshlrev_b32 v18, 4, v18
    v_add_u32 v16, v16, v18
    v_and_b32 v18, 1, v0
    v_lshlrev_b32 v18, 3, v18
    v_add_u32 v16, v16, v18
    s_lshl_b32 s{T}, s{S_WN}, 13
    s_add_u32 s{T}, s{T}, {LDS_W}
    s_mov_b32 s{S_XOFF}, 0
    """)
    for b in range(4):
        a(f"""
        v_xor_b32 v18, {2 * b}, v17
        v_lshlrev_b32 v18, 4, v18
        v_add_u32 v18, v18, v16
        v_add_u32 v{V_WR[0] + b}, s{T}, v18
        v_add_u32 v{V_WR[1] + b}, 0x10000, v{V_WR[0] + b}
        """)


def gemm_core(a, cfg):
    for s in range(5):
        issue(a, *g_dma_x(s))
    for r in range(64):
        a(f"v_accvgpr_write_b32 a{r}, 0")
    a("s_waitcnt vmcnt(4)")
    a("s_barrier")
    for l in g_xread(0, 0) + g_wread(0, 0):
        a(l)
    a("s_waitcnt lgkmcnt(0)")
    a("s_barrier")
    stamp(a, 7, cfg)
    a(f"s_mov_b32 s{S_LOOP}, 0")
    a.label("g3_loop")
    for j in range(10):
        g_substep(a, j, cfg)
    a(f"""
    s_add_u32 s{S_LOOP}, s{S_LOOP}, 1
    s_cmp_lt_u32 s{S_LOOP}, s{S_NLOOP}
    s_cbranch_scc1 g3_loop
    """)
    g_substep(a, 0, cfg)
    g_substep(a, 1, cfg, do_dma=False, vm=16)
    g_substep(a, 2, cfg, do_dma=False, vm=8)
    g_substep(a, 3, cfg, do_dma=False, vm=0)
    g_substep(a, 4, cfg, do_dma=False, vm=None)
    g_substep(a, 5, cfg, do_dma=False, do_read=False, do_wait=False)


def epi_s(a, cfg):
    T = S_T
    mk_srd(a, SRD_T, S_WS, WS_S, 4 * MB)
    a(f"""
    s_lshl_b32 s{T}, s{S_TILE}, 2
    s_add_u32 s{T}, s{T}, s{S_W}
    s_lshl_b32 s{T}, s{T}, 13
    s_add_u32 s{T + 1}, s{T}, 4096
    s_nop 7
    """)
    n = 0
    for pj in range(2):
        for i in range(4):
            b = V_E + 12 * (n % 3); n += 1
            for t in range(2):
                for r in range(4):
                    a(f"v_accvgpr_read_b32 v{b + 4 + 4 * t + r}, a{4 * ((2 * pj + t) * 4 + i) + r}")
            for k in range(4):
                a(f"v_cvt_pk_bf16_f32 v{b + k}, v{b + 4 + 2 * k}, v{b + 5 + 2 * k}")
            so = T if pj == 0 else T + 1
            a(f"buffer_store_dwordx4 {vr(b, 4)}, v{V_L16}, {sr(SRD_T, 4)}, s{so} offen offset:{i * 1024} sc1")


def load_x(a):
    T = S_T
    a(f"""
    s_lshl_b32 s{T}, s{S_RB128}, 18
    s_lshl_b32 s{T + 1}, s{S_CT}, 8
    s_add_u32 s{T}, s{T}, s{T + 1}
    """)
    mk_srd(a, SRD_R, S_PX, f"s{T}", f"{128 * 2048}")
    a(f"s_sub_u32 s{SRD_R + 2}, s{SRD_R + 2}, s{T + 1}")
    mk_srd(a, SRD_T, S_POUT, f"s{T}", f"{128 * 2048}")
    a(f"s_sub_u32 s{SRD_T + 2}, s{SRD_T + 2}, s{T + 1}")
    a(f"""
    v_and_b32 v16, 15, v0
    v_lshlrev_b32 v16, 11, v16
    s_lshl_b32 s{T}, s{S_WM}, 17
    s_lshl_b32 s{T + 1}, s{S_WN}, 7
    s_add_u32 s{T}, s{T}, s{T + 1}
    v_add_u32 v16, s{T}, v16
    v_lshrrev_b32 v17, 4, v0
    v_lshlrev_b32 v18, 3, v17
    v_add_u32 v{V_XA}, v16, v18
    v_and_b32 v18, 1, v17
    v_lshlrev_b32 v18, 5, v18
    v_add_u32 v16, v16, v18
    v_lshrrev_b32 v18, 1, v17
    v_lshlrev_b32 v18, 4, v18
    v_add_u32 v{V_OA}, v16, v18
    """)
    for i in range(4):
        a(f"s_mov_b32 s{T}, {i * 16 * 2048}")
        for jb in range(4):
            a(f"buffer_load_dwordx2 {vr(V_X + 2 * (jb * 4 + i), 2)}, v{V_XA}, {sr(SRD_R, 4)}, s{T} offen offset:{jb * 32}")


def epi_final(a, cfg):
    T = S_T
    mk_srd(a, SRD_P, S_WS, WS_S, 4 * MB)
    a(f"""
    s_lshl_b32 s{T}, s{S_TILE}, 2
    s_add_u32 s{T}, s{T}, s{S_W}
    s_lshl_b32 s{T}, s{T}, 13
    s_add_u32 s{T + 1}, s{T}, 4096
    """)
    for pj in range(2):
        for i in range(4):
            so = T if pj == 0 else T + 1
            a(f"buffer_load_dwordx4 {vr(V_SS + 4 * (pj * 4 + i), 4)}, v{V_L16}, {sr(SRD_P, 4)}, s{so} offen offset:{i * 1024} sc1")
    a(f"s_mov_b32 s{T + 2}, 0xbfb8aa3b")
    n = 0
    for pj in range(2):
        for i in range(4):
            k = pj * 4 + i
            a("s_waitcnt vmcnt(7)")
            b = V_E + 20 * (n & 1); n += 1
            for t in range(2):
                jb = 2 * pj + t
                for r in range(4):
                    a(f"v_accvgpr_read_b32 v{b + 4 + r}, a{4 * (jb * 4 + i) + r}")
                for r in range(4):
                    a(f"v_mul_f32 v{b + 8 + r}, s{T + 2}, v{b + 4 + r}")
                for r in range(4):
                    a(f"v_exp_f32 v{b + 8 + r}, v{b + 8 + r}")
                for r in range(4):
                    sv = V_SS + 4 * k + 2 * t + (r >> 1)
                    if r & 1: a(f"v_and_b32 v{b + 12 + r}, 0xffff0000, v{sv}")
                    else: a(f"v_lshlrev_b32 v{b + 12 + r}, 16, v{sv}")
                for r in range(4):
                    a(f"v_add_f32 v{b + 8 + r}, 1.0, v{b + 8 + r}")
                for r in range(4):
                    a(f"v_rcp_f32 v{b + 8 + r}, v{b + 8 + r}")
                for r in range(4):
                    a(f"v_mul_f32 v{b + 4 + r}, v{b + 4 + r}, v{b + 12 + r}")
                for r in range(4):
                    xv = V_X + 2 * (jb * 4 + i) + (r >> 1)
                    if r & 1: a(f"v_and_b32 v{b + 12 + r}, 0xffff0000, v{xv}")
                    else: a(f"v_lshlrev_b32 v{b + 12 + r}, 16, v{xv}")
                for r in range(4):
                    a(f"v_fma_f32 v{b + 4 + r}, v{b + 4 + r}, v{b + 8 + r}, v{b + 12 + r}")
                a(f"v_cvt_pk_bf16_f32 v{b + 2 * t}, v{b + 4}, v{b + 5}")
                a(f"v_cvt_pk_bf16_f32 v{b + 2 * t + 1}, v{b + 6}, v{b + 7}")
            a("s_nop 1")
            a(f"v_permlane16_swap_b32 v{b}, v{b + 2}")
            a(f"v_permlane16_swap_b32 v{b + 1}, v{b + 3}")
            a(f"s_mov_b32 s{T + 3}, {i * 16 * 2048}")
            a(f"buffer_store_dwordx4 {vr(b, 4)}, v{V_OA}, {sr(SRD_T, 4)}, s{T + 3} offen offset:{pj * 64}")
```

```python
import re

REG = re.compile(r"^(-?)\|?([vas])(?:(\d+)|\[(\d+):(\d+)\])\|?$")


def regs(tok):
    tok = tok.strip()
    m = REG.match(tok)
    if not m:
        if tok in ("vcc",): return {("s", 106), ("s", 107)}
        if tok == "m0": return {("s", 124)}
        if tok == "exec": return {("s", 126), ("s", 127)}
        return set()
    f = m.group(2)
    if m.group(3) is not None:
        lo = hi = int(m.group(3))
    else:
        lo, hi = int(m.group(4)), int(m.group(5))
    return {(f, r) for r in range(lo, hi + 1)}


TRANS = ("v_exp_f32", "v_log_f32", "v_rcp_f32", "v_rsq_f32", "v_sqrt_f32", "v_sin_f32", "v_cos_f32")


def parse(line):
    line = line.split(";")[0].strip()
    if not line or line.endswith(":") or line.startswith("."):
        return None
    p = line.split(None, 1)
    op = p[0]
    ops = [t.strip() for t in p[1].split(",")] if len(p) > 1 else []
    ops = [o.split()[0] if o else o for o in ops]
    return op, ops


def classify(op, ops):
    R = [regs(o) for o in ops]
    un = lambda l: set().union(*l) if l else set()
    if op.startswith("v_mfma"):
        return "mfma", R[0], un(R[1:])
    if op.startswith("v_cmp"):
        return "valu", R[0], un(R[1:])
    if op.startswith(("v_permlane16_swap", "v_permlane32_swap")):
        return "perm", R[0] | R[1], R[0] | R[1]
    if op.startswith("v_readfirstlane") or op.startswith("v_readlane"):
        return "rdlane", R[0], un(R[1:])
    if op.startswith("v_"):
        w = R[0]
        rd = un(R[1:])
        if op.startswith(("v_add_co", "v_addc_co", "v_sub_co")):
            w = R[0] | R[1]; rd = un(R[2:])
        if op.startswith("v_cndmask") and len(ops) == 3:
            rd |= regs("vcc")
        if op.startswith(("v_fmac", "v_dot2c")):
            rd |= R[0]
        return ("trans" if op.startswith(TRANS) else "valu"), w, rd
    if op.startswith("ds_read"):
        return "ds", R[0], un(R[1:])
    if op.startswith("ds_"):
        return "ds", set(), un(R)
    if op.startswith(("buffer_load", "global_load")):
        if "lds" in op or (ops and ops[-1].endswith("lds")):
            return "vmem", set(), un(R) | regs("m0")
        return "vmem", R[0], un(R[1:])
    if op.startswith(("buffer_store", "global_store", "buffer_atomic", "global_atomic")):
        return "vmemst", set(), un(R)
    if op.startswith("s_"):
        if op.startswith(("s_cmp", "s_waitcnt", "s_barrier", "s_branch", "s_cbranch", "s_nop", "s_endpgm", "s_sleep", "s_setprio")):
            return "salu", set(), un(R)
        return "salu", R[0] if R else set(), un(R[1:])
    return "other", set(), set()


def check(text, name=""):
    ins = []
    for ln, line in enumerate(text.split("\n"), 1):
        p = parse(line)
        if p is None:
            continue
        op, ops = p
        full = line.split(";")[0]
        if " lds" in full and op.startswith("buffer_load"):
            ops = ops + ["lds"]
        kind, w, r = classify(op, ops)
        states = 1
        if op == "s_nop":
            states = int(ops[0], 0) + 1
        passes = 0
        if kind == "mfma":
            passes = 8 if "32x32" in op else 4
        wide = kind == "vmemst" and ("x4" in op or "x3" in op)
        data = set()
        if wide:
            data = regs(ops[0]) if op.startswith("buffer") else regs(ops[1])
        ins.append((ln, line.strip(), kind, w, r, states, passes, data, op, ops))
    errs = []
    for i, (ln, txt, kind, w, r, st, ps, data, op, ops) in enumerate(ins):
        dist = 0
        for j in range(i - 1, max(-1, i - 24), -1):
            pl, ptxt, pk, pw, pr, pst, pps, pdata, pop, pops = ins[j]
            need = 0
            vw = {x for x in pw if x[0] in "va"}
            sw = {x for x in pw if x[0] == "s"}
            if pk in ("valu", "trans", "perm", "rdlane") and kind == "mfma" and vw & r:
                need = max(need, 2)
            if pk == "mfma":
                if kind == "mfma":
                    srcc = regs(ops[3]); ab = regs(ops[1]) | regs(ops[2])
                    if pw & ab: need = max(need, 8 if pps == 4 else 12)
                    if pw & srcc and pw != srcc: need = max(need, 6 if pps == 4 else 10)
                    if pw & w and not (pw == w and srcc == pw) and not (pw & srcc):
                        need = max(need, 8 if pps == 4 else 12)
                elif kind in ("valu", "trans", "perm", "rdlane", "vmemst", "vmem", "ds") and pw & (r | w):
                    need = max(need, 8 if pps == 4 else 12)
                if kind in ("valu", "trans", "perm") and regs(pops[3]) & w:
                    need = max(need, 3 if pps == 4 else 7)
            if pk == "trans" and kind in ("valu", "perm", "rdlane", "mfma", "vmemst", "ds") and vw & r:
                need = max(need, 1)
            if pk in ("valu", "trans") and kind == "perm" and vw & r:
                need = max(need, 2)
            if pk in ("valu", "trans", "perm") and kind == "rdlane" and vw & r:
                need = max(need, 1)
            if pk in ("valu", "rdlane") and kind in ("vmem", "vmemst") and sw & r:
                need = max(need, 5)
            if pk in ("valu", "rdlane") and kind in ("valu", "trans") and sw & r:
                need = max(need, 2)
            if pk == "salu" and ("s", 124) in pw and kind == "vmem" and ("s", 124) in r:
                need = max(need, 1)
            if pk == "vmemst" and pdata and kind in ("valu", "trans", "perm") and pdata & w:
                need = max(need, 2)
            if "dpp" in txt and pk in ("valu", "trans") and vw & r:
                need = max(need, 2)
            if need > dist:
                errs.append(f"{name}:{ln}: needs {need} wait states after line {pl} (has {dist})\n    {ptxt}\n    {txt}")
            dist += pst
            if pk == "salu" and pop in ("s_branch", "s_endpgm"):
                break
    return errs


if __name__ == "__main__":
    import sys
    for f in sys.argv[1:]:
        e = check(open(f).read(), f)
        print(f, len(e), "hazards")
        for x in e[:30]:
            print(x)
```

```python
import sys
sys.path.insert(0, "gen"); sys.path.insert(0, "exp")
from fz_common import *
import fz_common
import fz_g1 as g1
import fz_k2 as k2
import hazard

NAME = "recurrent_scan__sliding_block__glu_gated_bilinear__prompt"
KNAME = NAME + "_kernel"


def gen(cfg, kname=KNAME):
    fz_common._uid[0] = 0
    a = Asm()
    T = S_T
    g1.entry(a, cfg)
    g1.read_bases(a)
    g1.layernorm(a, cfg)
    stamp(a, 1, cfg)
    g1.prefetch_setup_after_wait = None
    g1.prefetch_setup(a)
    poll(a, K_XN, f"s_lshl_b32 s{T}, s{S_RB}, 5", "v_and_b32 v18, 31, v0")
    stamp(a, 2, cfg)
    for s in range(4):
        g1.issue(a, *g1.dma_x(s))
    a("s_waitcnt vmcnt(4)")
    a("s_barrier")
    for i in range(8):
        a(g1.x_read(i, 0, 0))
    a(f"s_cmp_eq_u32 s{S_TYP}, 1")
    a("s_cbranch_scc1 fz_g_path")

    def g1_main(typ):
        for jb in range(10):
            for t in g1.w_read(jb, 0, 0, typ):
                a(t)
        a("s_waitcnt lgkmcnt(0)")
        a("s_barrier")
        stamp(a, 3, cfg)
        g1.mainloop(a, typ, cfg)
        stamp(a, 4, cfg)

    g1_main("Q")
    k2.tile_ids(a)
    k2.gemm_w_prologue(a, 1024)
    g1.epilogue(a, "Q", cfg)
    signal(a, K_G1)
    a(f"s_cmp_eq_u32 s{S_RB}, 0")
    a("s_cbranch_scc1 fz_no_prev")
    poll(a, K_G1, f"s_sub_u32 s{T}, s{S_RB}, 1\ns_lshl_b32 s{T}, s{T}, 5\ns_add_u32 s{T}, s{T}, s{S_Q}", "v_mov_b32 v18, 0")
    a.label("fz_no_prev")
    k2.attention(a, cfg)
    stamp(a, 6, cfg)
    signal(a, K_O)
    k2.gemm_lane_setup(a)
    a(f"s_mul_i32 s{T + 8}, s{k2.S_RB128}, {32 * 8192}")
    a(f"s_add_u32 s{T + 8}, s{T + 8}, {WS_O}")
    mk_srd(a, k2.SRD_A, S_WS, f"s{T + 8}", 32 * 8192)
    a(f"s_mov_b32 s{k2.S_NLOOP}, 1")
    poll(a, K_O, f"s_lshr_b32 s{T}, s{k2.S_RB128}, 1\ns_lshl_b32 s{T}, s{T}, 5",
         "v_bfe_u32 v18, v0, 1, 3\nv_lshlrev_b32 v18, 2, v18\nv_and_b32 v19, 1, v0\nv_add_u32 v18, v18, v19")
    a("s_branch fz_gemm3")

    a.label("fz_g_path")
    g1_main("G")
    k2.tile_ids(a)
    k2.gemm_w_prologue(a, 3584)
    g1.epilogue(a, "G", cfg)
    signal(a, K_G1)
    k2.load_x(a)
    k2.gemm_lane_setup(a)
    a(f"s_mul_i32 s{T + 8}, s{k2.S_RB128}, {112 * 8192}")
    a(f"s_add_u32 s{T + 8}, s{T + 8}, {WS_H}")
    mk_srd(a, k2.SRD_A, S_WS, f"s{T + 8}", 112 * 8192)
    a(f"s_mov_b32 s{k2.S_NLOOP}, 5")
    stamp(a, 5, cfg)
    poll(a, K_G1, f"s_lshr_b32 s{T}, s{k2.S_RB128}, 1\ns_lshl_b32 s{T}, s{T}, 5", "v_and_b32 v18, 31, v0")
    stamp(a, 6, cfg)

    a.label("fz_gemm3")
    k2.gemm_core(a, cfg)
    stamp(a, 8, cfg)
    a(f"s_cmp_eq_u32 s{S_TYP}, 1")
    a("s_cbranch_scc1 fz_final")
    k2.epi_s(a, cfg)
    signal(a, K_S)
    a(f"s_cmp_eq_u32 s2, 0")
    a("s_cbranch_scc0 fz_done")
    a(f"s_cmp_eq_u32 s{S_W}, 0")
    a("s_cbranch_scc0 fz_done")
    for k in range(4):
        poll(a, K_XN, f"s_mov_b32 s{T}, {64 * k}", "v_mov_b32 v18, v0", barrier=False)
    mk_srd(a, SRD_F, S_WS, WS_FLAG, 64)
    a(f"""
    v_mov_b32 v16, s{S_TAG}
    v_mov_b32 v17, s{S_TAG + 1}
    v_mov_b32 v18, 0
    s_mov_b64 exec, 1
    buffer_store_dwordx2 v[16:17], v18, {sr(SRD_F, 4)}, 0 offen sc1
    s_mov_b64 exec, -1
    s_branch fz_done
    """)
    a.label("fz_final")
    poll(a, K_S, f"s_lshl_b32 s{T}, s{S_RB}, 5\ns_add_u32 s{T}, s{T}, s{S_Q}\ns_sub_u32 s{T}, s{T}, 2", "v_mov_b32 v18, 0")
    stamp(a, 9, cfg)
    k2.epi_final(a, cfg)
    a.label("fz_done")
    if cfg.get("stamps"):
        a("s_waitcnt vmcnt(0)")
        stamp(a, 10, cfg)
        mk_srd(a, SRD3, S_WS, WS_STAMP, MB)
        a("s_waitcnt lgkmcnt(0)")
        a(f"s_lshl_b32 s{T}, s2, 2")
        a(f"s_add_u32 s{T}, s{T}, s{S_W}")
        a(f"s_lshl_b32 s{T}, s{T}, 7")
        for k in range(22):
            a(f"v_mov_b32 v{16 + k}, s{S_STAMP + k}")
        a("v_mov_b32 v38, 0\nv_mov_b32 v39, 0\nv_mov_b32 v14, 0")
        a("s_mov_b64 exec, 1")
        for k in range(6):
            a(f"buffer_store_dwordx4 {vr(16 + 4 * k, 4)}, v14, {sr(SRD3, 4)}, s{T} offen offset:{16 * k}")
    a.label("fz_exit")
    a("s_endpgm")
    return kernel_head(kname) + a.text() + kernel_desc(kname, 512, 102, 256)


HDR = """; Sliding-window attention block and bilinear GLU block on a shared layer norm:
; @launch grid=(256,1,1) block=(256,1,1) lds=163840
"""


def build_final(cfg, path):
    t = HDR + '.amdgcn_target "amdgcn-amd-amdhsa--gfx950"\n' + gen(cfg)
    e = hazard.check(t, path)
    if e:
        print(len(e), "hazards"); print("\n".join(e[:20]))
    open(path, "w").write(t)
    print(path, t.count("\n"), "lines", len(t), "bytes")


def build_dev(cfg, out):
    from asmlib import assemble
    t = '.amdgcn_target "amdgcn-amd-amdhsa--gfx950"\n' + gen(cfg, "fz_kernel")
    e = hazard.check(t, out)
    if e:
        print(len(e), "hazards"); print("\n".join(e[:20]))
    assemble(t, out, [("fz_kernel", 102, 512, 256)])
    print(out, t.count("\n"), "lines", len(t), "bytes")


if __name__ == "__main__":
    build_dev({"stamps": 1}, "fz.co")
    if len(sys.argv) > 1 and sys.argv[1] == "final":
        build_final({}, f"cdna_kernels/{NAME}.s")
```

```python
from common import *

S_TYP = 3
S_PW, S_WS, S_PX, S_POUT = 4, 6, 8, 10
SRD0, SRD1, SRD2, SRD3, SRD4, SRD5, SRD6 = 12, 16, 20, 24, 28, 32, 36
S_W, S_WM, S_WN, S_RB, S_C = 40, 41, 42, 43, 44
S_T = 56
SRD_F = 72
S_TAG, S_Q, S_XCD = 76, 78, 79
S_STAMP = 80
FLAG_BASE = 4096
K_XN, K_A, K_O, K_S, K_B = 0, 1, 2, 3, 4
NKIND = 5
V_L16 = 1


def stamp(a, k, cfg):
    if cfg.get("stamps"):
        op = "s_memtime" if cfg.get("stamps") == "cyc" else "s_memrealtime"
        a(f"{op} {sr(S_STAMP + 2 * k, 2)}")


def mk_srd(a, reg, base, off, size):
    a(f"s_add_u32 s{reg}, s{base}, {off}")
    a(f"s_addc_u32 s{reg + 1}, s{base + 1}, 0")
    a(f"s_mov_b32 s{reg + 2}, {size}")
    a(f"s_mov_b32 s{reg + 3}, 0x20000")


def flag_srd(a):
    mk_srd(a, SRD_F, S_WS, WS_FLAG, FLAG_BASE + NKIND * 256 * 128)


_uid = [0]


def uid(p):
    _uid[0] += 1
    return f"{p}_{_uid[0]}"


def signal(a, kind, vm=0):
    T = S_T
    l = uid("sig")
    a(f"""
    s_waitcnt vmcnt({vm})
    s_barrier
    s_cmp_eq_u32 s{S_W}, 0
    s_cbranch_scc0 {l}
    s_lshl_b32 s{T}, s{S_RB}, 5
    s_add_u32 s{T}, s{T}, s{S_Q}
    s_add_u32 s{T}, s{T}, {kind * 256}
    s_lshl_b32 s{T}, s{T}, 7
    s_add_u32 s{T}, s{T}, {FLAG_BASE}
    v_mov_b32 v16, s{S_TAG}
    v_mov_b32 v17, s{S_TAG + 1}
    v_mov_b32 v18, 0
    s_mov_b64 exec, 1
    buffer_store_dwordx2 v[16:17], v18, {sr(SRD_F, 4)}, s{T} offen sc1
    s_mov_b64 exec, -1
    """)
    a.label(l)


def poll(a, kind, gid_base_code, lane_code, barrier=True, regs=(16, 20), drain=True):
    T = S_T
    l = uid("poll")
    a(f"s_cmp_eq_u32 s{S_W}, 0")
    a(f"s_cbranch_scc0 {l}_done")
    a(gid_base_code)
    a(f"""
    s_add_u32 s{T}, s{T}, {kind * 256}
    s_lshl_b32 s{T}, s{T}, 7
    s_add_u32 s{T}, s{T}, {FLAG_BASE}
    """)
    a(lane_code)
    a(f"""
    v_lshlrev_b32 v18, 7, v18
    s_mov_b32 s{T + 1}, 0
    """)
    r0, r1 = regs
    a(f"buffer_load_dwordx2 v[{r0}:{r0 + 1}], v18, {sr(SRD_F, 4)}, s{T} offen sc1")
    a.label(l)
    for x, y in ((r0, r1), (r1, r0)):
        a(f"""
        buffer_load_dwordx2 v[{y}:{y + 1}], v18, {sr(SRD_F, 4)}, s{T} offen sc1
        s_add_u32 s{T + 1}, s{T + 1}, 1
        s_waitcnt vmcnt(1)
        v_cmp_eq_u32 vcc, s{S_TAG}, v{x}
        v_cmp_eq_u32 {sr(T + 2, 2)}, s{S_TAG + 1}, v{x + 1}
        s_nop 1
        s_and_b64 vcc, vcc, {sr(T + 2, 2)}
        s_cmp_eq_u64 vcc, exec
        s_cbranch_scc1 {l}_ok
        """)
    a(f"""
    s_cmp_lt_u32 s{T + 1}, 0x80000
    s_cbranch_scc1 {l}
    """)
    a.label(f"{l}_ok")
    if drain:
        a("s_waitcnt vmcnt(0)")
    a.label(f"{l}_done")
    if barrier:
        a("s_barrier")


V_PD, V_PO = 184, 186


def signal_text(kind, pd=V_PD, po=V_PO):
    T = S_T
    l = uid("sig")
    return f"""s_cmp_eq_u32 s{S_W}, 0
    s_cbranch_scc0 {l}
    s_lshl_b32 s{T + 10}, s{S_RB}, 5
    s_add_u32 s{T + 10}, s{T + 10}, s{S_Q}
    s_add_u32 s{T + 10}, s{T + 10}, {kind * 256}
    s_lshl_b32 s{T + 10}, s{T + 10}, 7
    s_add_u32 s{T + 10}, s{T + 10}, {FLAG_BASE}
    v_mov_b32 v{pd}, s{S_TAG}
    v_mov_b32 v{pd + 1}, s{S_TAG + 1}
    v_mov_b32 v{po}, 0
    s_mov_b64 exec, 1
    buffer_store_dwordx2 {vr(pd, 2)}, v{po}, {sr(SRD_F, 4)}, s{T + 10} offen sc1
    s_mov_b64 exec, -1
    {l}:"""


def poll_setup_text(kind, gid_base_code, lane_code, pd=V_PD, po=V_PO):
    T = S_T
    return f"""{gid_base_code}
    s_add_u32 s{T + 10}, s{T + 10}, {kind * 256}
    s_lshl_b32 s{T + 10}, s{T + 10}, 7
    s_add_u32 s{T + 10}, s{T + 10}, {FLAG_BASE}
    {lane_code}
    v_lshlrev_b32 v{po}, 7, v{po}
    v_add_u32 v{po}, s{T + 10}, v{po}"""


def poll_load_text(pd=V_PD, po=V_PO):
    return f"buffer_load_dwordx2 {vr(pd, 2)}, v{po}, {sr(SRD_F, 4)}, 0 offen sc1"


def poll_check_text(pd=V_PD, po=V_PO):
    T = S_T
    l = uid("chk")
    return f"""s_mov_b32 s{T + 11}, 0
    {l}:
    v_cmp_eq_u32 vcc, s{S_TAG}, v{pd}
    v_cmp_eq_u32 {sr(T + 12, 2)}, s{S_TAG + 1}, v{pd + 1}
    s_nop 1
    s_and_b64 vcc, vcc, {sr(T + 12, 2)}
    s_cmp_eq_u64 vcc, exec
    s_cbranch_scc1 {l}_ok
    s_add_u32 s{T + 11}, s{T + 11}, 1
    s_cmp_ge_u32 s{T + 11}, 0x40000
    s_cbranch_scc1 {l}_ok
    s_sleep 1
    {poll_load_text(pd, po)}
    s_waitcnt vmcnt(0)
    s_branch {l}
    {l}_ok:"""
```

```python
from fz_common import *

SRD_X, SRD_G0, SRD_G1, SRD_G3, SRD_G4, SRD_O, SRD_O2 = SRD0, SRD1, SRD2, SRD3, SRD4, SRD5, SRD6
S_XOFF, S_WAOFF, S_WBOFF, S_INCA, S_INCB, S_INC2 = 45, 46, 47, 48, 49, 50
S_M0X, S_M0W, S_M02, S_LOOP = 52, 53, 54, 55

V_XD, V_WA, V_WB, V_G2, V_XR, V_WR, V_G2R = 13, 2, 3, 4, 6, 7, 11
V_XF = [16, 48]
V_WF = 80
V_WF2 = [112, 120]
V_E = 128
V_T = 188
V_PF = 190
V_ACC2 = 192
LDS_X, LDS_WM, LDS_G2, LDS_LN = 0, 65536, 131072, 147456
STR_QKV, STR_GLU = 6144, 7168
QSCALE = 0x3e8293ee


def acc(jb, i):
    n = jb * 8 + i
    return ar(4 * n, 4) if n < 64 else vr(V_ACC2 + 4 * (n - 64), 4)


def wfrag(jb, par):
    return V_WF + 4 * jb if jb < 8 else V_WF2[par] + 4 * (jb - 8)


def w_read(jb, par, slot, typ):
    r = wfrag(jb, par)
    if typ == "G":
        if jb < 8:
            base = V_WR + (jb >> 1)
            off = slot * 16384 + (8192 if jb & 1 else 0)
        else:
            base = V_G2R + (jb - 8)
            off = slot * 4096
    else:
        if jb in (4, 5):
            base = V_G2R + (jb - 4)
            off = slot * 4096
        else:
            grp, b = {0: (0, 0), 1: (0, 1), 2: (1, 0), 3: (1, 1), 6: (2, 0), 8: (2, 1), 7: (3, 0), 9: (3, 1)}[jb]
            base = V_WR + b
            off = slot * 16384 + grp * 4096
    return [f"ds_read_b64_tr_b16 {vr(r, 2)}, v{base} offset:{off}",
            f"ds_read_b64_tr_b16 {vr(r + 2, 2)}, v{base} offset:{off + 2048}"]


def x_read(i, par, slot):
    return f"ds_read_b128 {vr(V_XF[par] + 4 * i, 4)}, v{V_XR} offset:{slot * 16384 + i * 1024}"


def dma_x(slot):
    ops = []
    for i in range(4):
        setup = [f"s_add_u32 m0, s{S_M0X}, {slot * 16384}"] if i == 0 else []
        ops.append((setup, f"buffer_load_dwordx4 v{V_XD}, {sr(SRD_X, 4)}, s{S_XOFF} offen offset:{i * 1024} sc1 lds"))
    return ops, [f"s_add_u32 s{S_XOFF}, s{S_XOFF}, 16384"]


def dma_w(slot):
    ops = []
    for gi, (srd_, v, so) in enumerate([(SRD_G0, V_WA, S_WAOFF), (SRD_G1, V_WA, S_WAOFF),
                                        (SRD_G3, V_WB, S_WBOFF), (SRD_G4, V_WB, S_WBOFF)]):
        ops.append(([f"s_add_u32 m0, s{S_M0W}, {slot * 16384 + gi * 4096}"],
                    f"buffer_load_dwordx4 v{v}, {sr(srd_, 4)}, s{so} offen lds"))
    ops.append(([f"s_add_u32 m0, s{S_M02}, {slot * 4096}"], f"global_load_lds_dwordx4 {vr(V_G2, 2)}, off"))
    post = [f"s_add_u32 s{S_WAOFF}, s{S_WAOFF}, s{S_INCA}",
            f"s_add_u32 s{S_WBOFF}, s{S_WBOFF}, s{S_INCB}",
            f"v_lshl_add_u64 {vr(V_G2, 2)}, {sr(S_INC2, 2)}, 0, {vr(V_G2, 2)}"]
    return ops, post


def issue(a, ops, post):
    for setup_, ld in ops:
        for s in setup_:
            a(s)
            a("s_nop 0")
        a(ld)
    for t in post:
        a(t)


def substep(a, j, typ, cfg, first=False, do_read=True, do_dma=True, vm=18, do_wait=True, pre=()):
    par = j & 1
    swap = [typ == "Q" and jb in (4, 5) for jb in range(10)]
    mf = []
    for jb in range(10):
        for i in range(8):
            w = vr(wfrag(jb, par), 4)
            x = vr(V_XF[par] + 4 * i, 4)
            c = "0" if first else acc(jb, i)
            A, B = (x, w) if swap[jb] else (w, x)
            mf.append(f"v_mfma_f32_16x16x32_bf16 {acc(jb, i)}, {A}, {B}, {c}")
    fl = []
    for t in pre:
        fl.append((2, t))
    rs = (j + 1) & 3
    if do_read:
        for i in range(8):
            fl.append((8 * i + 1, x_read(i, 1 - par, rs)))
        extra = w_read(8, 1 - par, rs, typ) + w_read(9, 1 - par, rs, typ)
        for n, t in enumerate(extra):
            fl.append((8 * n + 3, t))
        for jb in range(8):
            r = w_read(jb, par, rs, typ)
            fl.append((8 * jb + 7, r[0]))
            fl.append((8 * jb + 8, r[1]))
    if do_dma:
        ox, px = dma_x(j & 3)
        ow, pw = dma_w(j & 3)
        ops = ox + ow
        for n, (setup, ld) in enumerate(ops):
            p = 5 + 8 * n
            for s in setup:
                fl.append((p - 1, s))
            fl.append((p, ld))
        fl.append((5 + 8 * 3 + 1, px[0]))
        for n, t in enumerate(pw):
            fl.append((5 + 8 * 8 + 1 + n, t))
    if do_wait:
        cnt = ([f"vmcnt({vm})"] if vm is not None else []) + ["lgkmcnt(0)"]
        fl.append((79, "s_waitcnt " + " ".join(cnt)))
        fl.append((79, "s_barrier"))
    fl.sort(key=lambda t: t[0])
    for l in interleave(mf, fl):
        a(l)


def entry(a, cfg):
    T = S_T
    a(f"""
    s_cmp_ge_u32 s2, 256
    s_cbranch_scc1 fz_exit
    s_load_dwordx2 {sr(T + 16, 2)}, s[0:1], {KA_X}
    s_load_dwordx2 {sr(S_WS, 2)}, s[0:1], {KA_WS}
    s_load_dwordx2 {sr(S_PW, 2)}, s[0:1], {KA_WQKV}
    s_load_dwordx4 {sr(S_PX, 4)}, s[0:1], {KA_GATE}
    """)
    stamp(a, 0, cfg)
    a(f"""
    v_lshrrev_b32 v14, 6, v0
    v_and_b32 v0, 63, v0
    v_readfirstlane_b32 s{S_W}, v14
    v_lshlrev_b32 v{V_L16}, 4, v0
    s_and_b32 s{S_XCD}, s2, 7
    s_lshr_b32 s{T + 1}, s2, 3
    s_and_b32 s{S_RB}, s{T + 1}, 7
    s_lshr_b32 s{T + 1}, s{T + 1}, 3
    s_lshl_b32 s{S_Q}, s{S_XCD}, 2
    s_add_u32 s{S_Q}, s{S_Q}, s{T + 1}
    s_lshr_b32 s{S_TYP}, s{T + 1}, 1
    s_and_b32 s{T + 1}, s{T + 1}, 1
    s_lshl_b32 s{T}, s{S_XCD}, 1
    s_add_u32 s{S_C}, s{T}, s{T + 1}
    s_lshr_b32 s{S_WM}, s{S_W}, 1
    s_and_b32 s{S_WN}, s{S_W}, 1
    """)
    a(f"""
    v_and_b32 v64, 7, v0
    v_bfe_u32 v65, v0, 3, 1
    v_lshrrev_b32 v66, 4, v0
    v_lshlrev_b32 v67, 11, v64
    v_lshlrev_b32 v68, 6, v65
    v_add_u32 v67, v67, v68
    v_lshlrev_b32 v68, 3, v66
    v_add_u32 v67, v67, v68
    s_lshl_b32 s{T}, s{S_W}, 9
    v_add_u32 v67, s{T}, v67
    s_lshl_b32 s{T}, s{S_RB}, 5
    s_add_u32 s{T}, s{T}, s{S_Q}
    s_lshl_b32 s{T}, s{T}, 14
    s_waitcnt lgkmcnt(0)
    """)
    mk_srd(a, SRD_O, T + 16, f"s{T}", 16384)
    for p in range(4):
        for t in range(2):
            a(f"buffer_load_dwordx2 {vr(32 + 4 * p + 2 * t, 2)}, v67, {sr(SRD_O, 4)}, 0 offen offset:{p * 128 + t * 32}")
    a(f"s_add_u32 s{T}, s{S_WS}, {WS_FLAG}")
    a(f"s_addc_u32 s{T + 1}, s{S_WS + 1}, 0")
    a(f"s_load_dwordx2 {sr(S_TAG, 2)}, {sr(T, 2)}, 0")
    a(f"""
    v_lshrrev_b32 v14, 3, v0
    v_and_b32 v15, 6, v14
    v_and_b32 v16, 7, v0
    v_xor_b32 v15, v15, v16
    s_lshl_b32 s{T}, s{S_W}, 3
    v_add_u32 v14, s{T}, v14
    s_lshl_b32 s{T}, s{S_W}, 12
    v_add_u32 v{V_XD}, s{T}, v{V_L16}
    s_add_u32 s{S_M0X}, s{T}, {LDS_X}
    s_lshl_b32 s{T}, s{S_W}, 10
    s_add_u32 s{S_M0W}, s{T}, {LDS_WM}
    s_add_u32 s{S_M02}, s{T}, {LDS_G2}
    """)
    WQ, GA, UP = S_PW, S_PX, S_POUT
    P0, P1, P3, P4 = T + 12, T + 14, T + 16, T + 18

    def setp(dst, src):
        a(f"s_mov_b32 s{dst}, s{src}")
        a(f"s_mov_b32 s{dst + 1}, s{src + 1}")

    def add64(dst, src, off):
        a(f"s_add_u32 s{dst}, s{src}, {off}")
        a(f"s_addc_u32 s{dst + 1}, s{src + 1}, 0")

    a(f"s_cmp_eq_u32 s{S_TYP}, 1")
    a("s_cbranch_scc1 g1_set_glu")
    a(f"s_lshl_b32 s{T}, s{S_C}, 7")
    a(f"s_add_u32 s{T + 1}, s{T}, 2048")
    a(f"s_mov_b32 s{T + 2}, s{T}")
    a(f"s_mov_b32 s{T + 3}, s{T}")
    setp(P0, WQ); setp(P1, WQ); setp(P3, GA); setp(P4, UP)
    a(f"s_add_u32 s{T + 8}, s{T}, 4096")
    add64(T + 4, WQ, f"s{T + 8}")
    add64(T + 6, T + 4, 64)
    a(f"""
    s_mov_b32 s{T + 8}, 32
    s_mov_b32 s{T + 9}, {STR_QKV}
    s_mov_b32 s{T + 10}, {STR_GLU}
    s_mov_b32 s{T + 11}, {STR_QKV}
    s_branch g1_set_done
    """)
    a.label("g1_set_glu")
    a(f"""
    s_mul_i32 s{T + 10}, s{S_C}, 320
    s_add_u32 s{T + 10}, s{T + 10}, 2048
    s_and_b32 s{T + 9}, s{S_C}, 1
    s_lshl_b32 s{T + 11}, s{T + 9}, 6
    s_add_u32 s{T}, s{T + 10}, s{T + 11}
    s_add_u32 s{T + 1}, s{T}, 128
    s_mov_b32 s{T + 2}, s{T}
    s_mov_b32 s{T + 3}, s{T + 1}
    s_cmp_eq_u32 s{T + 9}, 0
    s_cselect_b32 s{T + 11}, 256, 0
    s_add_u32 s{T + 8}, s{T + 10}, s{T + 11}
    """)
    setp(P0, GA); setp(P1, GA); setp(P3, UP); setp(P4, UP)
    add64(T + 4, GA, f"s{T + 8}")
    add64(T + 6, UP, f"s{T + 8}")
    a(f"""
    s_mov_b32 s{T + 8}, 32
    s_mov_b32 s{T + 9}, {STR_GLU}
    s_mov_b32 s{T + 10}, {STR_GLU}
    s_mov_b32 s{T + 11}, {STR_GLU}
    """)
    a.label("g1_set_done")
    for srd_, p, co, st in ((SRD_G0, P0, T, T + 9), (SRD_G1, P1, T + 1, T + 9),
                            (SRD_G3, P3, T + 2, T + 10), (SRD_G4, P4, T + 3, T + 10)):
        a(f"""
        s_add_u32 s{srd_}, s{p}, s{co}
        s_addc_u32 s{srd_ + 1}, s{p + 1}, 0
        s_lshl_b32 s{srd_ + 2}, s{st}, 10
        s_sub_u32 s{srd_ + 2}, s{srd_ + 2}, s{co}
        s_mov_b32 s{srd_ + 3}, 0x20000
        """)
    a(f"""
    s_lshl_b32 s{S_INCA}, s{T + 9}, 5
    s_lshl_b32 s{S_INCB}, s{T + 10}, 5
    s_lshl_b32 s{S_INC2}, s{T + 11}, 5
    s_mov_b32 s{S_INC2 + 1}, 0
    s_mov_b32 s{S_XOFF}, 0
    s_mov_b32 s{S_WAOFF}, 0
    s_mov_b32 s{S_WBOFF}, 0
    v_lshlrev_b32 v16, 4, v15
    v_mul_lo_u32 v{V_WA}, v14, s{T + 9}
    v_add_u32 v{V_WA}, v{V_WA}, v16
    v_mul_lo_u32 v{V_WB}, v14, s{T + 10}
    v_add_u32 v{V_WB}, v{V_WB}, v16
    v_mul_lo_u32 v14, v14, s{T + 11}
    v_and_b32 v16, 1, v15
    v_lshlrev_b32 v16, 4, v16
    v_add_u32 v14, v14, v16
    v_bfe_u32 v16, v15, 1, 1
    v_mul_lo_u32 v16, v16, s{T + 8}
    v_add_u32 v14, v14, v16
    v_cmp_gt_u32 vcc, 4, v15
    v_mov_b32 v{V_G2}, s{T + 6}
    v_mov_b32 v16, s{T + 4}
    v_cndmask_b32 v{V_G2}, v{V_G2}, v16, vcc
    v_mov_b32 v{V_G2 + 1}, s{T + 7}
    v_mov_b32 v16, s{T + 5}
    v_cndmask_b32 v{V_G2 + 1}, v{V_G2 + 1}, v16, vcc
    v_add_co_u32 v{V_G2}, vcc, v{V_G2}, v14
    s_nop 1
    v_addc_co_u32 v{V_G2 + 1}, vcc, 0, v{V_G2 + 1}, vcc
    """)
    for s in range(4):
        issue(a, *dma_w(s))
    a(f"""
    s_cmp_eq_u32 s{S_TYP}, 0
    s_cselect_b32 s{T}, {KA_WO}, {KA_DOWN}
    s_load_dwordx2 {sr(S_PW, 2)}, s[0:1], s{T}
    s_load_dwordx2 {sr(S_PX, 2)}, s[0:1], {KA_X}
    s_load_dwordx2 {sr(S_POUT, 2)}, s[0:1], {KA_OUT}
    s_load_dwordx2 {sr(T + 12, 2)}, s[0:1], {KA_DOWN}
    s_load_dwordx2 {sr(T + 14, 2)}, s[0:1], {KA_WO}
    """)
    a(f"s_lshl_b32 s{T}, s{S_RB}, 19")
    mk_srd(a, SRD_X, S_WS, f"s{T}", 512 * 1024)


def read_bases(a):
    T = S_T
    a(f"""
    s_lshl_b32 s{T}, s{S_WM}, 13
    v_add_u32 v{V_XR}, s{T}, v{V_L16}
    v_lshrrev_b32 v14, 2, v0
    v_and_b32 v15, 6, v14
    v_lshlrev_b32 v14, 7, v14
    v_bfe_u32 v16, v0, 1, 1
    v_lshlrev_b32 v16, 4, v16
    v_add_u32 v14, v14, v16
    v_and_b32 v16, 1, v0
    v_lshlrev_b32 v16, 3, v16
    v_add_u32 v14, v14, v16
    s_cmp_eq_u32 s{S_TYP}, 1
    s_cbranch_scc1 g1_rb_glu
    """)
    for n in range(2):
        a(f"""
        s_lshl_b32 s{T}, s{S_WN}, 1
        s_add_u32 s{T}, s{T}, {n}
        s_lshl_b32 s{T}, s{T}, 1
        v_xor_b32 v16, s{T}, v15
        v_lshlrev_b32 v16, 4, v16
        v_add_u32 v16, v16, v14
        v_add_u32 v{V_WR + n}, {LDS_WM}, v16
        v_add_u32 v{V_G2R + n}, {LDS_G2}, v16
        """)
    a(f"""
    v_mov_b32 v{V_WR + 2}, v{V_WR}
    v_mov_b32 v{V_WR + 3}, v{V_WR}
    s_branch g1_rb_done
    """)
    a.label("g1_rb_glu")
    a(f"s_lshl_b32 s{T}, s{S_WN}, 12")
    a(f"s_add_u32 s{T}, s{T}, {LDS_WM}")
    for b in range(4):
        a(f"""
        v_xor_b32 v16, {2 * b}, v15
        v_lshlrev_b32 v16, 4, v16
        v_add_u32 v16, v16, v14
        v_add_u32 v{V_WR + b}, s{T}, v16
        """)
    for n in range(2):
        a(f"""
        s_add_u32 s{T}, s{S_WN}, {2 * n}
        s_lshl_b32 s{T}, s{T}, 1
        v_xor_b32 v16, s{T}, v15
        v_lshlrev_b32 v16, 4, v16
        v_add_u32 v16, v16, v14
        v_add_u32 v{V_G2R + n}, {LDS_G2}, v16
        """)
    a.label("g1_rb_done")


def layernorm(a, cfg, nw=20):
    T = S_T
    a(f"""
    s_and_b32 s{T}, s{S_Q}, 1
    s_lshl_b32 s{T}, s{T}, 3
    v_add_u32 v68, s{T}, v64
    v_lshlrev_b32 v68, 4, v68
    v_lshlrev_b32 v69, 8, v66
    v_add_u32 v68, v68, v69
    v_lshlrev_b32 v69, 14, v65
    v_add_u32 v68, v68, v69
    v_lshlrev_b32 v70, 2, v64
    v_add_u32 v70, {LDS_LN}, v70
    s_lshl_b32 s{T}, s{S_W}, 5
    v_add_u32 v71, s{T}, v70
    s_lshl_b32 s{T + 4}, s{S_RB}, 5
    s_lshl_b32 s{T}, s{S_W}, 3
    s_add_u32 s{T + 4}, s{T + 4}, s{T}
    s_lshl_b32 s{T + 4}, s{T + 4}, 14
    s_lshr_b32 s{T}, s{S_Q}, 1
    s_lshl_b32 s{T}, s{T}, 10
    s_add_u32 s{T + 4}, s{T + 4}, s{T}
    """)
    mk_srd(a, SRD_O, S_WS, WS_X2, 4 * MB)
    a(f"s_waitcnt vmcnt({nw})")
    if cfg.get("rawx", 0):
        for p in range(4):
            a(f"s_add_u32 s{T + 5}, s{T + 4}, {p * 32768}")
            a(f"buffer_store_dwordx4 {vr(32 + 4 * p, 4)}, v68, {sr(SRD_O, 4)}, s{T + 5} offen sc1")
    mk_srd(a, SRD_O, S_WS, WS_XN, 4 * MB)
    for k in range(16):
        a(f"v_lshlrev_b32 v{80 + 2 * k}, 16, v{32 + k}")
        a(f"v_and_b32 v{81 + 2 * k}, 0xffff0000, v{32 + k}")

    def reduce_all(off):
        a("v_add_f32 v72, v72, v73")
        a("v_add_f32 v74, v74, v75")
        a("v_add_f32 v72, v72, v74")
        a("s_nop 1")
        a("v_add_f32_dpp v72, v72, v72 row_ror:8 row_mask:0xf bank_mask:0xf")
        xor_reduce(a, "v_add_f32", 72, 76, steps=(32, 16))
        a(f"""
        ds_write_b32 v71, v72 offset:{off}
        s_waitcnt lgkmcnt(0)
        s_barrier
        ds_read_b32 v72, v70 offset:{off}
        ds_read_b32 v73, v70 offset:{off + 32}
        ds_read_b32 v74, v70 offset:{off + 64}
        ds_read_b32 v75, v70 offset:{off + 96}
        s_waitcnt lgkmcnt(0)
        v_add_f32 v72, v72, v73
        v_add_f32 v74, v74, v75
        v_add_f32 v72, v72, v74
        """)
    for q in range(4):
        a(f"v_add_f32 v{72 + q}, v{80 + q}, v{84 + q}")
    for k in range(8, 32, 4):
        for q in range(4):
            a(f"v_add_f32 v{72 + q}, v{72 + q}, v{80 + k + q}")
    reduce_all(0)
    a("v_mul_f32 v77, 0x3a800000, v72")
    for q in range(4):
        a(f"v_sub_f32 v78, v{80 + q}, v77")
        a(f"v_mul_f32 v{72 + q}, v78, v78")
    for k in range(4, 32):
        a(f"v_sub_f32 v{78 + (k & 1)}, v{80 + k}, v77")
        a(f"v_fmac_f32 v{72 + (k & 3)}, v{78 + (k & 1)}, v{78 + (k & 1)}")
    reduce_all(128)
    a("""
    v_mul_f32 v72, 0x3a800000, v72
    v_cvt_pk_bf16_f32 v72, v72, v77
    v_and_b32 v77, 0xffff0000, v72
    v_lshlrev_b32 v72, 16, v72
    v_add_f32 v72, 0x3727c5ac, v72
    v_cvt_pk_bf16_f32 v72, v72, v72
    v_lshlrev_b32 v72, 16, v72
    v_sqrt_f32 v72, v72
    s_nop 0
    v_cvt_pk_bf16_f32 v72, v72, v72
    v_lshlrev_b32 v72, 16, v72
    v_rcp_f32 v78, v72
    """)
    for p in range(4):
        for k in range(4):
            e = 80 + 8 * p + 2 * k
            a(f"v_sub_f32 v{e}, v{e}, v77")
            a(f"v_sub_f32 v{e + 1}, v{e + 1}, v77")
            a(f"v_cvt_pk_bf16_f32 v79, v{e}, v{e + 1}")
            a(f"v_lshlrev_b32 v{e}, 16, v79")
            a(f"v_and_b32 v{e + 1}, 0xffff0000, v79")
            a(f"v_mul_f32 v{e}, v{e}, v78")
            a(f"v_mul_f32 v{e + 1}, v{e + 1}, v78")
            a(f"v_cvt_pk_bf16_f32 v{112 + 4 * p + k}, v{e}, v{e + 1}")
        a(f"s_add_u32 s{T + 5}, s{T + 4}, {p * 32768}")
        a(f"buffer_store_dwordx4 {vr(112 + 4 * p, 4)}, v68, {sr(SRD_O, 4)}, s{T + 5} offen sc1")
    a(f"s_add_u32 s{S_TAG}, s{S_TAG}, 1")
    signal(a, K_XN, 0)


def prefetch_setup(a):
    T = S_T
    a(f"s_mul_i32 s{T}, s2, 28672")
    mk_srd(a, SRD_O, T + 12, f"s{T}", 28672)
    a(f"s_lshl_b32 s{T}, s2, 13")
    mk_srd(a, SRD_O2, T + 14, f"s{T}", 8192)
    a(f"""
    s_lshl_b32 s{T}, s{S_W}, 13
    v_lshlrev_b32 v{V_PF}, 7, v0
    v_add_u32 v{V_PF}, s{T}, v{V_PF}
    """)


def mainloop(a, typ, cfg):
    a(f"s_mov_b32 s{S_LOOP}, 0")
    pf = cfg.get("pf", 1)
    pre = {1: [f"buffer_load_dword v{V_PF + 1}, v{V_PF}, {sr(SRD_O, 4)}, 0 offen"],
           2: [f"buffer_load_dword v{V_PF + 1}, v{V_PF}, {sr(SRD_O2, 4)}, 0 offen"]} if pf else {}
    vms = [18, 19, 20, 19] if pf else [18] * 4
    for j in range(4):
        substep(a, j, typ, cfg, first=(j == 0), vm=vms[j], pre=pre.get(j, ()))
    l = f"g1_loop_{typ}"
    a.label(l)
    for j in range(4):
        substep(a, j, typ, cfg)
    a(f"""
    s_add_u32 s{S_LOOP}, s{S_LOOP}, 1
    s_cmp_lt_u32 s{S_LOOP}, 6
    s_cbranch_scc1 {l}
    """)
    substep(a, 0, typ, cfg, do_dma=False, vm=9)
    substep(a, 1, typ, cfg, do_dma=False, vm=0)
    substep(a, 2, typ, cfg, do_dma=False, vm=None)
    substep(a, 3, typ, cfg, do_dma=False, do_read=False, do_wait=False)


def rd(a, dst, jb, i, r):
    n = jb * 8 + i
    if n < 64:
        a(f"v_accvgpr_read_b32 v{dst}, a{4 * n + r}")
        return f"v{dst}"
    return f"v{V_ACC2 + 4 * (n - 64) + r}"


class Rot:
    def __init__(self):
        self.n = 0

    def next(self):
        b = V_E + 12 * (self.n % 5)
        self.n += 1
        return b


def pack8(a, lo, hi, base):
    a(f"v_cvt_pk_bf16_f32 v{base}, {lo[0]}, {lo[1]}")
    a(f"v_cvt_pk_bf16_f32 v{base + 1}, {lo[2]}, {lo[3]}")
    a(f"v_cvt_pk_bf16_f32 v{base + 2}, {hi[0]}, {hi[1]}")
    a(f"v_cvt_pk_bf16_f32 v{base + 3}, {hi[2]}, {hi[3]}")


def epi_heads(a, rot, j0, j1, scale=False):
    T = S_T
    a(f"s_add_u32 s{T + 1}, s{T}, 4096")
    for i in range(8):
        b = rot.next()
        lo = [rd(a, b + 4 + r, j0, i, r) for r in range(4)]
        hi = [rd(a, b + 8 + r, j1, i, r) for r in range(4)]
        if scale:
            for r, x in enumerate(lo + hi):
                a(f"v_mul_f32 v{b + 4 + r}, {QSCALE:#x}, {x}")
            lo = [f"v{b + 4 + r}" for r in range(4)]
            hi = [f"v{b + 8 + r}" for r in range(4)]
        pack8(a, lo, hi, b)
        so = T if i < 4 else T + 1
        a(f"buffer_store_dwordx4 {vr(b, 4)}, v{V_T}, {sr(SRD_O, 4)}, s{so} offen offset:{(i & 3) * 1024} sc1")


def epi_v(a, rot, jb):
    T = S_T
    a(f"s_add_u32 s{T + 1}, s{T}, 4096")
    for u in range(4):
        b = rot.next()
        lo = [rd(a, b + 4 + r, jb, 2 * u, r) for r in range(4)]
        hi = [rd(a, b + 8 + r, jb, 2 * u + 1, r) for r in range(4)]
        pack8(a, lo, hi, b)
        so = T if u < 2 else T + 1
        a(f"buffer_store_dwordx4 {vr(b, 4)}, v{V_T}, {sr(SRD_O2, 4)}, s{so} offen offset:{(u & 1) * 2048} sc1")


def epi_glu(a, rot, pairs):
    T = S_T
    a(f"s_add_u32 s{T + 1}, s{T}, 4096")
    for i in range(8):
        b = rot.next()
        for t, (g, u) in enumerate(pairs):
            xs = [(rd(a, b + 4 + r, g, i, r), rd(a, b + 8 + r, u, i, r)) for r in range(4)]
            for r in range(4):
                a(f"v_mul_f32 v{b + 4 + r}, {xs[r][0]}, {xs[r][1]}")
            a(f"v_cvt_pk_bf16_f32 v{b + 2 * t}, v{b + 4}, v{b + 5}")
            a(f"v_cvt_pk_bf16_f32 v{b + 2 * t + 1}, v{b + 6}, v{b + 7}")
        so = T if i < 4 else T + 1
        if len(pairs) == 2:
            a(f"buffer_store_dwordx4 {vr(b, 4)}, v{V_T}, {sr(SRD_O, 4)}, s{so} offen offset:{(i & 3) * 1024} sc1")
        else:
            a(f"buffer_store_dwordx2 {vr(b, 2)}, v{V_T + 1}, {sr(SRD_O, 4)}, s{so} offen offset:{(i & 3) * 1024} sc1")


def epilogue(a, typ, cfg):
    T = S_T
    a(f"v_mov_b32 v{V_T}, v{V_L16}")
    a(f"s_lshl_b32 s{T + 2}, s{S_WN}, 3")
    a(f"v_add_u32 v{V_T + 1}, s{T + 2}, v{V_T}")
    a(f"s_lshl_b32 s{T + 4}, s{S_RB}, 4")
    a(f"s_lshl_b32 s{T + 5}, s{S_WM}, 3")
    a(f"s_add_u32 s{T + 4}, s{T + 4}, s{T + 5}")

    def head_off(head_reg, add=0):
        a(f"s_lshl_b32 s{T}, s{head_reg}, 17")
        a(f"s_lshl_b32 s{T + 5}, s{T + 4}, 10")
        a(f"s_add_u32 s{T}, s{T}, s{T + 5}")
        if add:
            a(f"s_add_u32 s{T}, s{T}, {add}")

    def h_off(stage_reg, add):
        a(f"s_lshr_b32 s{T}, s{T + 4}, 3")
        a(f"s_mul_i32 s{T}, s{T}, 112")
        a(f"s_add_u32 s{T}, s{T}, s{stage_reg}")
        if add:
            a(f"s_add_u32 s{T}, s{T}, {add}")
        a(f"s_lshl_b32 s{T}, s{T}, 13")

    GA, GB, G2 = T + 6, T + 7, T + 8
    rot = Rot()
    if typ == "Q":
        a(f"s_lshl_b32 s{GA}, s{S_C}, 1")
        a(f"s_add_u32 s{GA}, s{GA}, s{S_WN}")
        mk_srd(a, SRD_O, S_WS, WS_QK, 8 * MB)
        mk_srd(a, SRD_O2, S_WS, WS_V, 4 * MB)
        head_off(GA, 4 * MB)
        epi_heads(a, rot, 2, 3)
        head_off(GA)
        epi_v(a, rot, 4)
        head_off(GA, 1024)
        epi_v(a, rot, 5)
        head_off(GA)
        epi_heads(a, rot, 0, 1, scale=True)
        mk_srd(a, SRD_O, S_WS, WS_H, 2048 * 3584 * 2)
        h_off(GA, 0)
        epi_glu(a, rot, [(6, 7), (8, 9)])
    else:
        mk_srd(a, SRD_O, S_WS, WS_H, 2048 * 3584 * 2)
        a(f"""
        s_mul_i32 s{G2}, s{S_C}, 5
        s_add_u32 s{G2}, s{G2}, 32
        s_and_b32 s{GB}, s{S_C}, 1
        s_add_u32 s{GA}, s{G2}, s{GB}
        s_lshl_b32 s{T + 9}, s{S_WN}, 1
        s_add_u32 s{GA}, s{GA}, s{T + 9}
        s_cmp_eq_u32 s{GB}, 0
        s_cselect_b32 s{T + 9}, 4, 0
        s_add_u32 s{G2}, s{G2}, s{T + 9}
        """)
        h_off(GA, 0)
        epi_glu(a, rot, [(0, 1), (2, 3)])
        h_off(GA, 1)
        epi_glu(a, rot, [(4, 5), (6, 7)])
        h_off(G2, 0)
        epi_glu(a, rot, [(8, 9)])
```

```python
from fz_common import *
from sched import *
import fz_g1 as old

SRD_X, SRD_A0, SRD_A1, SRD_B0, SRD_B1, SRD_O, SRD_O2 = SRD0, SRD1, SRD2, SRD3, SRD4, SRD5, SRD6
S_XOFF, S_WAOFF, S_WBOFF, S_INCA, S_INCB, S_INC2 = 45, 46, 47, 48, 49, 50
S_M0X, S_M0W, S_M02 = 52, 53, 54
S_CNT = 71

V_WA, V_WB, V_G2 = 2, 3, 4
V_XR, V_WR, V_G2R = 6, 7, 9
V_XF = [16, 48]
V_WF = [80, 120]
V_E = 160
V_XD, V_T1, V_PF = 188, 189, 190
V_PFE = 13
LNNT = ""
PFG = 7
PFT_LINES = 16
V_PFB = 187
V_PFM = 15
V_ACC2 = 192
XSC = " sc1"
LDS_X, LDS_WM, LDS_G2, LDS_LN = 0, 65536, 131072, 147456
NSLOT = 4
STR_QKV, STR_GLU = 6144, 7168
QSCALE = 0x3e8293ee
S_FULL = 20
STEPS = []


def make_steps(S):
    global S_FULL, STEPS
    S_FULL = S
    STEPS = [("F", s) for s in range(S)] + [("A", s) for s in range(S, 32)] + [("B", s) for s in range(S, 32)]
    return STEPS


BLOCKS = {"F": range(10), "A": range(4), "B": range(4, 10)}


def acc(jb, i, r=0):
    n = jb * 8 + i
    return ("a", 4 * n + r) if n < 64 else ("v", V_ACC2 + 4 * (n - 64) + r)


def rng(x, n=4):
    return ar(x[1], n) if x[0] == "a" else vr(x[1], n)


def reads(n1):
    par, slot = n1 & 1, n1 % NSLOT
    out = [f"ds_read_b128 {vr(V_XF[par] + 4 * i, 4)}, v{V_XR} offset:{slot * 16384 + i * 1024}" for i in range(8)]
    w = []
    for jb in BLOCKS[STEPS[n1][0]]:
        r = V_WF[par] + 4 * jb
        if jb < 8:
            base, off = V_WR + (jb & 1), slot * 16384 + (jb >> 1) * 4096
        else:
            base, off = V_G2R + (jb - 8), slot * 4096
        w.append(f"ds_read_b64_tr_b16 {vr(r, 2)}, v{base} offset:{off}")
        w.append(f"ds_read_b64_tr_b16 {vr(r + 2, 2)}, v{base} offset:{off + 2048}")
    return out, w


def dma_x(n):
    o = (n % NSLOT) * 16384
    ops = []
    for i in range(4):
        setup = [f"s_add_u32 m0, s{S_M0X}, {o}"] if i == 0 else []
        ops.append((setup, f"buffer_load_dwordx4 v{V_XD}, {sr(SRD_X, 4)}, s{S_XOFF} offen offset:{i * 1024}{XSC} lds"))
    return ops, [f"s_add_u32 s{S_XOFF}, s{S_XOFF}, 16384"]


WNT = False
IDXMAP = 1
ENTRY_HOOK = None


def dma_w(n):
    ops, post = dma_w0(n)
    if WNT and STEPS[n][0] == "F":
        ops = [(su, ld.replace(" offen lds", " offen nt lds").replace(", off", ", off nt") if "global_load_lds" not in ld else ld + " nt") for su, ld in ops]
    return ops, post


def dma_w0(n):
    kind = STEPS[n][0]
    slot = n % NSLOT
    o = slot * 16384
    ops, post = [], []
    if kind in "FA":
        ops += [([f"s_add_u32 m0, s{S_M0W}, {o}"], f"buffer_load_dwordx4 v{V_WA}, {sr(SRD_A0, 4)}, s{S_WAOFF} offen lds"),
                ([f"s_add_u32 m0, s{S_M0W}, {o + 4096}"], f"buffer_load_dwordx4 v{V_WA}, {sr(SRD_A1, 4)}, s{S_WAOFF} offen lds")]
        post += [f"s_add_u32 s{S_WAOFF}, s{S_WAOFF}, s{S_INCA}"]
    if kind in "FB":
        ops += [([f"s_add_u32 m0, s{S_M0W}, {o + 8192}"], f"buffer_load_dwordx4 v{V_WB}, {sr(SRD_B0, 4)}, s{S_WBOFF} offen lds"),
                ([f"s_add_u32 m0, s{S_M0W}, {o + 12288}"], f"buffer_load_dwordx4 v{V_WB}, {sr(SRD_B1, 4)}, s{S_WBOFF} offen lds"),
                ([f"s_add_u32 m0, s{S_M02}, {slot * 4096}"], f"global_load_lds_dwordx4 {vr(V_G2, 2)}, off")]
        post += [f"s_add_u32 s{S_WBOFF}, s{S_WBOFF}, s{S_INCB}",
                 f"v_lshl_add_u64 {vr(V_G2, 2)}, {sr(S_INC2, 2)}, 0, {vr(V_G2, 2)}"]
    return ops, post


def dma_stream(groups, tag):
    out = []
    for ops, post in groups:
        for setup, ld in ops:
            for t in setup:
                out.append((I(t), "sep"))
            out.append(V(ld, tag))
        out += [I(t) for t in post]
    return out


def substep(n, typ, extra=(), need=(), after=(), cfg={}):
    N = len(STEPS)
    kind, stage = STEPS[n]
    par = n & 1
    mf = []
    for jb in BLOCKS[kind]:
        for i in range(8):
            w = vr(V_WF[par] + 4 * jb, 4)
            x = vr(V_XF[par] + 4 * i, 4)
            d = rng(acc(jb, i))
            c = "0" if n == 0 else d
            p, q = (x, w) if (typ == "Q" and jb in (2, 3)) else (w, x)
            mf.append(I(f"v_mfma_f32_16x16x32_bf16 {d}, {p}, {q}, {c}"))
    M = len(mf)
    streams = []
    if n + 1 < N:
        xr, wr = reads(n + 1)
        rd = []
        k = 0
        nw = len(wr)
        for i in range(8):
            rd.append(xr[i])
            hi = (nw * (i + 1)) // 8
            rd += wr[k:hi]
            k = hi
        streams.append(([I(t) for t in rd], 0, M - cfg.get("rdend", 9)))
    if n + NSLOT < N:
        m = n + NSLOT
        pre = []
        if STEPS[m][0] == "B" and STEPS[m - 1][0] == "A":
            pre = [I(f"s_mov_b32 s{S_XOFF}, {S_FULL * 16384}")]
        dend = M - 3 if kind == "F" else min(M - 3, cfg.get("t_dmaend", M))
        streams.append((pre + dma_stream([dma_x(m), dma_w(m)], ("st", m)), 0, dend))
    for e in extra:
        if e:
            streams.append((list(e), 1, M - 1))
    fl = place(M, streams, cfg.get("cap", 8))
    if n + 1 < N:
        fl.append((M - 1, W([("st", n + 2)] + list(need))))
        fl.append((M - 1, I("s_barrier")))
        for e in after:
            fl.append((M - 1, e))
    return weave2(mf, fl)


def entry(a, cfg):
    T = S_T
    a(f"""
    s_cmp_lt_u32 s2, 256
    s_cbranch_scc1 fz_start
    s_endpgm
    fz_start:
    s_load_dwordx2 {sr(T + 16, 2)}, s[0:1], {KA_X}
    s_load_dwordx2 {sr(S_WS, 2)}, s[0:1], {KA_WS}
    s_load_dwordx2 {sr(S_PW, 2)}, s[0:1], {KA_WQKV}
    s_load_dwordx4 {sr(S_PX, 4)}, s[0:1], {KA_GATE}
    """)
    stamp(a, 0, cfg)
    a(f"""
    v_lshrrev_b32 v14, 6, v0
    v_and_b32 v0, 63, v0
    v_readfirstlane_b32 s{S_W}, v14
    v_lshlrev_b32 v{V_L16}, 4, v0
    s_and_b32 s{S_XCD}, s2, 7
    s_lshr_b32 s{T + 1}, s2, 3
    """)
    if IDXMAP == 1:
        a(f"""
        s_and_b32 s{T}, s{T + 1}, 1
        s_lshl_b32 s{T}, s{T}, 4
        s_lshr_b32 s{T + 1}, s{T + 1}, 1
        s_or_b32 s{T + 1}, s{T + 1}, s{T}
        """)
    elif IDXMAP == 3:
        a(f"""
        s_and_b32 s{T}, s{T + 1}, 1
        s_lshl_b32 s{T}, s{T}, 4
        s_bfe_u32 s{T + 2}, s{T + 1}, 0x20001
        s_lshl_b32 s{T + 2}, s{T + 2}, 2
        s_lshr_b32 s{T + 1}, s{T + 1}, 3
        s_or_b32 s{T + 1}, s{T + 1}, s{T + 2}
        s_or_b32 s{T + 1}, s{T + 1}, s{T}
        """)
    elif IDXMAP == 2:
        a(f"""
        s_and_b32 s{T}, s{T + 1}, 2
        s_lshl_b32 s{T}, s{T}, 3
        s_and_b32 s{T + 2}, s{T + 1}, 1
        s_lshr_b32 s{T + 1}, s{T + 1}, 2
        s_lshl_b32 s{T + 1}, s{T + 1}, 1
        s_or_b32 s{T + 1}, s{T + 1}, s{T + 2}
        s_or_b32 s{T + 1}, s{T + 1}, s{T}
        """)
    a(f"""
    s_and_b32 s{S_RB}, s{S_XCD}, 1
    s_lshl_b32 s{S_RB}, s{S_RB}, 2
    s_and_b32 s{T}, s{T + 1}, 3
    s_add_u32 s{S_RB}, s{S_RB}, s{T}
    s_lshr_b32 s{T + 1}, s{T + 1}, 2
    s_lshr_b32 s{S_TYP}, s{T + 1}, 2
    s_and_b32 s{T + 1}, s{T + 1}, 3
    s_lshr_b32 s{S_C}, s{S_XCD}, 1
    s_lshl_b32 s{S_C}, s{S_C}, 2
    s_add_u32 s{S_C}, s{S_C}, s{T + 1}
    s_lshr_b32 s{S_Q}, s{S_C}, 1
    s_lshl_b32 s{S_Q}, s{S_Q}, 1
    s_add_u32 s{S_Q}, s{S_Q}, s{S_TYP}
    s_lshl_b32 s{S_Q}, s{S_Q}, 1
    s_and_b32 s{T}, s{S_C}, 1
    s_add_u32 s{S_Q}, s{S_Q}, s{T}
    s_lshr_b32 s{S_WM}, s{S_W}, 1
    s_and_b32 s{S_WN}, s{S_W}, 1
    v_and_b32 v64, 7, v0
    v_bfe_u32 v65, v0, 3, 1
    v_lshrrev_b32 v66, 4, v0
    v_lshlrev_b32 v67, 11, v64
    v_lshlrev_b32 v68, 6, v65
    v_add_u32 v67, v67, v68
    v_lshlrev_b32 v68, 3, v66
    v_add_u32 v67, v67, v68
    s_lshl_b32 s{T}, s{S_W}, 9
    v_add_u32 v67, s{T}, v67
    s_lshl_b32 s{T}, s{S_RB}, 5
    s_add_u32 s{T}, s{T}, s{S_Q}
    s_lshl_b32 s{T}, s{T}, 14
    """)
    if ENTRY_HOOK and not cfg.get("hook_late", 1):
        ENTRY_HOOK(a)
    a("s_waitcnt lgkmcnt(0)")
    mk_srd(a, SRD_O, T + 16, f"s{T}", 16384)
    for p in range(4):
        for t in range(2):
            a(f"buffer_load_dwordx2 {vr(32 + 4 * p + 2 * t, 2)}, v67, {sr(SRD_O, 4)}, 0 offen offset:{p * 128 + t * 32}{LNNT}")
    if ENTRY_HOOK and cfg.get("hook_late", 1):
        ENTRY_HOOK(a)
    if cfg.get("tlb", 0):
        a(f"""
        s_mov_b32 s{SRD_O2}, s{S_WS}
        s_mov_b32 s{SRD_O2 + 1}, s{S_WS + 1}
        s_mov_b32 s{SRD_O2 + 2}, {48 * MB}
        s_mov_b32 s{SRD_O2 + 3}, 0x20000
        s_lshl_b32 s{T}, s{S_W}, 3
        v_and_b32 v16, 7, v0
        v_add_u32 v16, s{T}, v16
        v_lshlrev_b32 v16, 21, v16
        s_lshl_b32 s{T}, s2, 7
        v_add_u32 v16, s{T}, v16
        v_mov_b32 v17, 0
        s_mov_b64 exec, 0xff
        buffer_atomic_add v17, v16, {sr(SRD_O2, 4)}, 0 offen
        s_mov_b64 exec, -1
        """)
    a(f"s_add_u32 s{T}, s{S_WS}, {WS_FLAG}")
    a(f"s_addc_u32 s{T + 1}, s{S_WS + 1}, 0")
    a(f"s_load_dwordx2 {sr(S_TAG, 2)}, {sr(T, 2)}, 0")
    a(f"""
    v_lshrrev_b32 v14, 3, v0
    v_and_b32 v15, 6, v14
    v_and_b32 v16, 7, v0
    v_xor_b32 v15, v15, v16
    s_lshl_b32 s{T}, s{S_W}, 3
    v_add_u32 v14, s{T}, v14
    s_lshl_b32 s{S_M0X}, s{S_W}, 12
    v_add_u32 v{V_XD}, s{S_M0X}, v{V_L16}
    s_lshl_b32 s{T}, s{S_W}, 10
    s_add_u32 s{S_M0W}, s{T}, {LDS_WM}
    s_add_u32 s{S_M02}, s{T}, {LDS_G2}
    """)
    WQ, GA, UP = S_PW, S_PX, S_POUT
    P0, P1, P3, P4 = T + 12, T + 14, T + 16, T + 18

    def setp(dst, src):
        a(f"s_mov_b32 s{dst}, s{src}")
        a(f"s_mov_b32 s{dst + 1}, s{src + 1}")

    def add64(dst, src, off):
        a(f"s_add_u32 s{dst}, s{src}, {off}")
        a(f"s_addc_u32 s{dst + 1}, s{src + 1}, 0")

    a(f"s_cmp_eq_u32 s{S_TYP}, 1")
    a("s_cbranch_scc1 g1_set_glu")
    a(f"s_lshl_b32 s{T + 8}, s{S_C}, 7")
    a(f"s_add_u32 s{T}, s{T + 8}, 2048")
    a(f"s_add_u32 s{T + 1}, s{T + 8}, 4096")
    a(f"s_add_u32 s{T + 2}, s{T + 8}, 5120")
    a(f"s_mov_b32 s{T + 3}, s{T + 2}")
    setp(P0, WQ); setp(P1, WQ); setp(P3, GA); setp(P4, UP)
    add64(T + 4, WQ, f"s{T + 8}")
    add64(T + 6, T + 4, 64)
    a(f"""
    s_mov_b32 s{T + 9}, {STR_QKV}
    s_mov_b32 s{T + 11}, {STR_QKV}
    s_branch g1_set_done
    """)
    a.label("g1_set_glu")
    a(f"""
    s_lshl_b32 s{T}, s{S_C}, 7
    s_mov_b32 s{T + 1}, s{T}
    s_mul_i32 s{T + 10}, s{S_C}, 192
    s_add_u32 s{T + 10}, s{T + 10}, 2048
    s_and_b32 s{T + 9}, s{S_C}, 1
    s_lshl_b32 s{T + 11}, s{T + 9}, 6
    s_add_u32 s{T + 2}, s{T + 10}, s{T + 11}
    s_mov_b32 s{T + 3}, s{T + 2}
    s_cmp_eq_u32 s{T + 9}, 0
    s_cselect_b32 s{T + 11}, 128, 0
    s_add_u32 s{T + 8}, s{T + 10}, s{T + 11}
    """)
    setp(P0, GA); setp(P1, UP); setp(P3, GA); setp(P4, UP)
    add64(T + 4, GA, f"s{T + 8}")
    add64(T + 6, UP, f"s{T + 8}")
    a(f"""
    s_mov_b32 s{T + 9}, {STR_GLU}
    s_mov_b32 s{T + 11}, {STR_GLU}
    """)
    a.label("g1_set_done")
    a(f"s_mov_b32 s{T + 8}, 32")
    a(f"s_mov_b32 s{T + 10}, {STR_GLU}")
    for srd_, p, co, st in ((SRD_A0, P0, T, T + 9), (SRD_A1, P1, T + 1, T + 9),
                            (SRD_B0, P3, T + 2, T + 10), (SRD_B1, P4, T + 3, T + 10)):
        a(f"""
        s_add_u32 s{srd_}, s{p}, s{co}
        s_addc_u32 s{srd_ + 1}, s{p + 1}, 0
        s_lshl_b32 s{srd_ + 2}, s{st}, 10
        s_sub_u32 s{srd_ + 2}, s{srd_ + 2}, s{co}
        s_mov_b32 s{srd_ + 3}, 0x20000
        """)
    a(f"""
    s_lshl_b32 s{S_INCA}, s{T + 9}, 5
    s_lshl_b32 s{S_INCB}, s{T + 10}, 5
    s_lshl_b32 s{S_INC2}, s{T + 11}, 5
    s_mov_b32 s{S_INC2 + 1}, 0
    s_mov_b32 s{S_XOFF}, 0
    s_mov_b32 s{S_WAOFF}, 0
    s_mov_b32 s{S_WBOFF}, 0
    v_lshlrev_b32 v16, 4, v15
    v_mul_lo_u32 v{V_WA}, v14, s{T + 9}
    v_add_u32 v{V_WA}, v{V_WA}, v16
    v_mul_lo_u32 v{V_WB}, v14, s{T + 10}
    v_add_u32 v{V_WB}, v{V_WB}, v16
    v_mul_lo_u32 v14, v14, s{T + 11}
    v_and_b32 v16, 1, v15
    v_lshlrev_b32 v16, 4, v16
    v_add_u32 v14, v14, v16
    v_bfe_u32 v16, v15, 1, 1
    v_mul_lo_u32 v16, v16, s{T + 8}
    v_add_u32 v14, v14, v16
    v_cmp_gt_u32 vcc, 4, v15
    v_mov_b32 v{V_G2}, s{T + 6}
    v_mov_b32 v16, s{T + 4}
    v_cndmask_b32 v{V_G2}, v{V_G2}, v16, vcc
    v_mov_b32 v{V_G2 + 1}, s{T + 7}
    v_mov_b32 v16, s{T + 5}
    v_cndmask_b32 v{V_G2 + 1}, v{V_G2 + 1}, v16, vcc
    v_add_co_u32 v{V_G2}, vcc, v{V_G2}, v14
    s_nop 1
    v_addc_co_u32 v{V_G2 + 1}, vcc, 0, v{V_G2 + 1}, vcc
    """)
    for s in range(NSLOT):
        old.issue(a, *dma_w(s))
    if cfg.get("pfs", 0):
        prefetch_rows_now(a, WQ, GA, UP, 128, cfg["pfs"])
    if cfg.get("pft", 1):
        prefetch_tail_setup(a, WQ, GA, UP)
    a(f"""
    s_cmp_eq_u32 s{S_TYP}, 0
    s_cselect_b32 s{T}, {KA_WO}, {KA_DOWN}
    s_load_dwordx2 {sr(S_PW, 2)}, s[0:1], s{T}
    s_load_dwordx2 {sr(S_PX, 2)}, s[0:1], {KA_X}
    s_load_dwordx2 {sr(S_POUT, 2)}, s[0:1], {KA_OUT}
    s_load_dwordx2 {sr(T + 12, 2)}, s[0:1], {KA_DOWN}
    s_load_dwordx2 {sr(T + 14, 2)}, s[0:1], {KA_WO}
    """)
    a(f"s_lshl_b32 s{T}, s{S_RB}, 19")
    mk_srd(a, SRD_X, S_WS, f"s{T}", 512 * 1024)
    flag_srd(a)


def prefetch_tail_setup(a, WQ, GA, UP):
    T = S_T
    r0 = 32 * S_FULL
    nq = (1024 - r0) * STR_QKV // 8192
    ng = (1024 - r0) * STR_GLU // 8192
    a(f"""
    s_lshl_b32 s{T}, s2, 2
    s_add_u32 s{T}, s{T}, s{S_W}
    s_mov_b32 s{SRD_O2}, s{WQ}
    s_mov_b32 s{SRD_O2 + 1}, s{WQ + 1}
    s_mov_b32 s{SRD_O2 + 2}, {1024 * STR_QKV}
    s_mov_b32 s{T + 1}, {r0 * STR_QKV}
    s_cmp_lt_u32 s{T}, {nq}
    s_cbranch_scc1 g1_pft_done
    s_sub_u32 s{T}, s{T}, {nq}
    s_mov_b32 s{SRD_O2}, s{GA}
    s_mov_b32 s{SRD_O2 + 1}, s{GA + 1}
    s_mov_b32 s{SRD_O2 + 2}, {1024 * STR_GLU}
    s_mov_b32 s{T + 1}, {r0 * STR_GLU}
    s_cmp_lt_u32 s{T}, {ng}
    s_cbranch_scc1 g1_pft_done
    s_sub_u32 s{T}, s{T}, {ng}
    s_mov_b32 s{SRD_O2}, s{UP}
    s_mov_b32 s{SRD_O2 + 1}, s{UP + 1}
    """)
    a.label("g1_pft_done")
    a(f"""
    s_mov_b32 s{SRD_O2 + 3}, 0x20000
    s_lshl_b32 s{T}, s{T}, 13
    s_add_u32 s{T + 1}, s{T + 1}, s{T}
    v_and_b32 v{V_PFB}, {PFT_LINES - 1}, v0
    v_lshlrev_b32 v{V_PFB}, 7, v{V_PFB}
    v_add_u32 v{V_PFB}, s{T + 1}, v{V_PFB}
    s_mov_b32 s{T}, {(r0 - 128) * STR_GLU}
    s_cmp_eq_u32 s{SRD_O2 + 2}, {1024 * STR_QKV}
    s_cselect_b32 s{T}, {(r0 - 128) * STR_QKV}, s{T}
    s_sub_u32 s{T + 1}, s{T + 1}, s{T}
    v_lshlrev_b32 v{V_PFE}, 7, v0
    v_add_u32 v{V_PFE}, s{T + 1}, v{V_PFE}
    """)


def prefetch_rows_now(a, WQ, GA, UP, r0, nrows):
    T = S_T
    nq = nrows * STR_QKV // 8192
    ng = nrows * STR_GLU // 8192
    a(f"""
    s_lshl_b32 s{T}, s2, 2
    s_add_u32 s{T}, s{T}, s{S_W}
    s_mov_b32 s{SRD_O2}, s{WQ}
    s_mov_b32 s{SRD_O2 + 1}, s{WQ + 1}
    s_mov_b32 s{SRD_O2 + 2}, {(r0 + nrows) * STR_QKV}
    s_mov_b32 s{T + 1}, {r0 * STR_QKV}
    s_cmp_lt_u32 s{T}, {nq}
    s_cbranch_scc1 g1_pfs_done
    s_sub_u32 s{T}, s{T}, {nq}
    s_mov_b32 s{SRD_O2}, s{GA}
    s_mov_b32 s{SRD_O2 + 1}, s{GA + 1}
    s_mov_b32 s{SRD_O2 + 2}, {(r0 + nrows) * STR_GLU}
    s_mov_b32 s{T + 1}, {r0 * STR_GLU}
    s_cmp_lt_u32 s{T}, {ng}
    s_cbranch_scc1 g1_pfs_done
    s_sub_u32 s{T}, s{T}, {ng}
    s_mov_b32 s{SRD_O2}, s{UP}
    s_mov_b32 s{SRD_O2 + 1}, s{UP + 1}
    """)
    a.label("g1_pfs_done")
    a(f"""
    s_mov_b32 s{SRD_O2 + 3}, 0x20000
    s_lshl_b32 s{T}, s{T}, 13
    s_add_u32 s{T + 1}, s{T + 1}, s{T}
    v_lshlrev_b32 v16, 7, v0
    v_add_u32 v16, s{T + 1}, v16
    buffer_load_dword v{V_PF + 1}, v16, {sr(SRD_O2, 4)}, 0 offen
    """)


def prefetch_early(a):
    l = uid("pfe")
    a(f"s_cmp_eq_u32 s{S_W}, 0")
    a(f"s_cbranch_scc1 {l}")
    a(f"buffer_load_dword v{V_PF + 1}, v{V_PFE}, {sr(SRD_O2, 4)}, 0 offen")
    a.label(l)


def prefetch_start(a, WQ, GA, UP):
    T = S_T
    a(f"""
    s_lshl_b32 s{T}, s2, 2
    s_add_u32 s{T}, s{T}, s{S_W}
    s_lshl_b32 s{T + 1}, s{T}, 13
    s_add_u32 s{T + 1}, s{T + 1}, {160 * STR_QKV}
    v_lshlrev_b32 v16, 7, v0
    s_mov_b32 s{SRD_O}, s{WQ}
    s_mov_b32 s{SRD_O + 1}, s{WQ + 1}
    s_mov_b32 s{SRD_O + 2}, {1024 * STR_QKV}
    s_mov_b32 s{SRD_O + 3}, 0x20000
    v_add_u32 v16, s{T + 1}, v16
    buffer_load_dword v{V_PF + 1}, v16, {sr(SRD_O, 4)}, 0 offen
    s_cmp_lt_u32 s{T}, 432
    s_cselect_b32 s{SRD_O}, s{GA}, s{UP}
    s_cselect_b32 s{SRD_O + 1}, s{GA + 1}, s{UP + 1}
    s_cselect_b32 s{T + 1}, 0, 432
    s_mov_b32 s{SRD_O + 2}, {1024 * STR_GLU}
    s_sub_u32 s{T + 1}, s{T}, s{T + 1}
    s_lshl_b32 s{T + 1}, s{T + 1}, 1
    s_add_u32 s{T + 1}, s{T + 1}, 160
    v_lshrrev_b32 v17, 5, v0
    v_add_u32 v17, s{T + 1}, v17
    s_mov_b32 s{T + 2}, {STR_GLU}
    v_mul_lo_u32 v17, v17, s{T + 2}
    v_and_b32 v16, 31, v0
    v_min_u32 v18, 23, v16
    v_lshlrev_b32 v18, 7, v18
    v_add_u32 v18, v17, v18
    buffer_load_dword v{V_PF + 1}, v18, {sr(SRD_O, 4)}, 0 offen
    s_cmp_lt_u32 s{T}, 512
    s_cselect_b32 s{SRD_O2}, s{GA}, s{UP}
    s_cselect_b32 s{SRD_O2 + 1}, s{GA + 1}, s{UP + 1}
    s_mov_b32 s{SRD_O2 + 2}, {1024 * STR_GLU}
    s_mov_b32 s{SRD_O2 + 3}, 0x20000
    s_and_b32 s{T + 1}, s{T}, 511
    s_lshl_b32 s{T + 1}, s{T + 1}, 1
    v_lshrrev_b32 v17, 5, v0
    v_add_u32 v17, s{T + 1}, v17
    v_mul_lo_u32 v17, v17, s{T + 2}
    v_lshlrev_b32 v16, 7, v16
    v_add_u32 v17, v17, v16
    v_add_u32 v{V_PFB}, 3072, v17
    """)


def read_bases(a):
    T = S_T
    a(f"""
    s_lshl_b32 s{T}, s{S_WM}, 13
    v_add_u32 v{V_XR}, s{T}, v{V_L16}
    v_lshrrev_b32 v16, 2, v0
    v_and_b32 v17, 6, v16
    v_lshlrev_b32 v16, 7, v16
    v_bfe_u32 v18, v0, 1, 1
    v_lshlrev_b32 v18, 4, v18
    v_add_u32 v16, v16, v18
    v_and_b32 v18, 1, v0
    v_lshlrev_b32 v18, 3, v18
    v_add_u32 v16, v16, v18
    """)
    for n in range(2):
        a(f"""
        s_lshl_b32 s{T}, s{S_WN}, 1
        s_add_u32 s{T}, s{T}, {n}
        s_add_u32 s{T + 1}, s{S_WN}, {2 * n}
        s_cmp_eq_u32 s{S_TYP}, 0
        s_cselect_b32 s{T + 1}, s{T}, s{T + 1}
        s_lshl_b32 s{T}, s{T}, 1
        s_lshl_b32 s{T + 1}, s{T + 1}, 1
        v_xor_b32 v18, s{T}, v17
        v_lshlrev_b32 v18, 4, v18
        v_add_u32 v18, v18, v16
        v_add_u32 v{V_WR + n}, {LDS_WM}, v18
        v_xor_b32 v18, s{T + 1}, v17
        v_lshlrev_b32 v18, 4, v18
        v_add_u32 v18, v18, v16
        v_add_u32 v{V_G2R + n}, {LDS_G2}, v18
        """)


def layernorm(a, cfg):
    old.LDS_LN = LDS_LN
    old.layernorm(a, cfg, nw=5 * NSLOT + (2 if cfg.get("pf0", 0) else 0) + (1 if cfg.get("tlb", 0) else 0) + (1 if (ENTRY_HOOK and cfg.get("hook_late", 1)) else 0) + (1 if cfg.get("pfs", 0) else 0))


def prefetch_setup(a):
    T = S_T
    a(f"s_mul_i32 s{T}, s2, 28672")
    mk_srd(a, SRD_O, T + 12, f"s{T}", 28672)
    a(f"s_lshl_b32 s{T}, s2, 13")
    a(f"s_add_u32 s{T + 12}, s{T + 14}, s{T}")
    a(f"s_addc_u32 s{T + 13}, s{T + 15}, 0")
    a(f"""
    s_lshl_b32 s{T}, s{S_W}, 13
    v_and_b32 v{V_PF}, {(2048 >> PFG) - 1}, v0
    v_lshlrev_b32 v{V_PF}, {PFG}, v{V_PF}
    v_add_u32 v{V_PF}, s{T}, v{V_PF}
    s_lshl_b32 s{T}, s{S_W}, 11
    v_and_b32 v{V_PFM}, {(2048 >> PFG) - 1}, v0
    v_lshlrev_b32 v{V_PFM}, {PFG}, v{V_PFM}
    v_add_u32 v{V_PFM}, s{T}, v{V_PFM}
    """)


class Rot:
    def __init__(self, nset=2):
        self.n = 0
        self.nset = nset

    def next(self):
        b = V_E + 12 * (self.n % self.nset)
        self.n += 1
        return b


def rd(out, dst, x, r):
    if x[0] == "a":
        out.append(I(f"v_accvgpr_read_b32 v{dst}, a{x[1] + r}"))
        return f"v{dst}"
    return f"v{x[1] + r}"


def e_pack8(out, lo, hi, base):
    out.append(I(f"v_cvt_pk_bf16_f32 v{base}, {lo[0]}, {lo[1]}"))
    out.append(I(f"v_cvt_pk_bf16_f32 v{base + 1}, {lo[2]}, {lo[3]}"))
    out.append(I(f"v_cvt_pk_bf16_f32 v{base + 2}, {hi[0]}, {hi[1]}"))
    out.append(I(f"v_cvt_pk_bf16_f32 v{base + 3}, {hi[2]}, {hi[3]}"))


def e_heads(rot, acc, j0, j1, tag, keep=None):
    T = S_T
    out = [] if keep is not None else [I(f"s_add_u32 s{T + 1}, s{T}, 4096")]
    for i in range(8):
        b = rot.next()
        lo = [rd(out, b + 4 + r, acc(j0, i), r) for r in range(4)]
        hi = [rd(out, b + 8 + r, acc(j1, i), r) for r in range(4)]
        if keep is not None:
            for r, x in enumerate(lo + hi):
                out.append(I(f"v_mul_f32 v{b + 4 + r}, {QSCALE:#x}, {x}"))
            e_pack8(out, [f"v{b + 4 + r}" for r in range(4)], [f"v{b + 8 + r}" for r in range(4)], keep + 4 * i)
            continue
        e_pack8(out, lo, hi, b)
        so = T if i < 4 else T + 1
        out.append(V(f"buffer_store_dwordx4 {vr(b, 4)}, v{V_L16}, {sr(SRD_O, 4)}, s{so} offen offset:{(i & 3) * 1024} sc1", tag))
    return out


def e_v(rot, acc, jb, tag):
    T = S_T
    out = [I(f"s_add_u32 s{T + 1}, s{T}, 4096")]
    for u in range(4):
        b = rot.next()
        lo = [rd(out, b + 4 + r, acc(jb, 2 * u), r) for r in range(4)]
        hi = [rd(out, b + 8 + r, acc(jb, 2 * u + 1), r) for r in range(4)]
        e_pack8(out, lo, hi, b)
        so = T if u < 2 else T + 1
        out.append(V(f"buffer_store_dwordx4 {vr(b, 4)}, v{V_L16}, {sr(SRD_O2, 4)}, s{so} offen offset:{(u & 1) * 2048} sc1", tag))
    return out


def e_glu(rot, acc, pairs, tag):
    T = S_T
    out = [I(f"s_add_u32 s{T + 1}, s{T}, 4096")]
    for i in range(8):
        b = rot.next()
        for t, (g, u) in enumerate(pairs):
            xs = [(rd(out, b + 4 + r, acc(g, i), r), rd(out, b + 8 + r, acc(u, i), r)) for r in range(4)]
            for r in range(4):
                out.append(I(f"v_mul_f32 v{b + 4 + r}, {xs[r][0]}, {xs[r][1]}"))
            out.append(I(f"v_cvt_pk_bf16_f32 v{b + 2 * t}, v{b + 4}, v{b + 5}"))
            out.append(I(f"v_cvt_pk_bf16_f32 v{b + 2 * t + 1}, v{b + 6}, v{b + 7}"))
        so = T if i < 4 else T + 1
        if len(pairs) == 2:
            out.append(V(f"buffer_store_dwordx4 {vr(b, 4)}, v{V_L16}, {sr(SRD_O, 4)}, s{so} offen offset:{(i & 3) * 1024} sc1", tag))
        else:
            out.append(V(f"buffer_store_dwordx2 {vr(b, 2)}, v{V_T1}, {sr(SRD_O, 4)}, s{so} offen offset:{(i & 3) * 1024} sc1", tag))
    return out


def srd_text(reg, off, size):
    return I(f"""s_add_u32 s{reg}, s{S_WS}, {off}
    s_addc_u32 s{reg + 1}, s{S_WS + 1}, 0
    s_mov_b32 s{reg + 2}, {size}
    s_mov_b32 s{reg + 3}, 0x20000""")


def tok0():
    T = S_T
    return [I(f"s_lshl_b32 s{T + 4}, s{S_RB}, 4"), I(f"s_lshl_b32 s{T + 5}, s{S_WM}, 3"),
            I(f"s_add_u32 s{T + 4}, s{T + 4}, s{T + 5}")]


def head_off(head_reg, add=0):
    T = S_T
    o = [I(f"s_lshl_b32 s{T}, s{head_reg}, 17"), I(f"s_lshl_b32 s{T + 5}, s{T + 4}, 10"), I(f"s_add_u32 s{T}, s{T}, s{T + 5}")]
    if add:
        o.append(I(f"s_add_u32 s{T}, s{T}, {add}"))
    return o


def h_off(stage_reg):
    T = S_T
    return [I(f"s_lshr_b32 s{T}, s{T + 4}, 3"), I(f"s_mul_i32 s{T}, s{T}, 112"),
            I(f"s_add_u32 s{T}, s{T}, s{stage_reg}"), I(f"s_lshl_b32 s{T}, s{T}, 13")]


HSIZE = 2048 * 3584 * 2


def epilogue_a(typ):
    T = S_T
    GA = T + 6
    rot = Rot()
    o = tok0()
    if typ == "Q":
        o += [I(f"s_lshl_b32 s{GA}, s{S_C}, 1"), I(f"s_add_u32 s{GA}, s{GA}, s{S_WN}")]
        o += [srd_text(SRD_O, WS_QK, 8 * MB), srd_text(SRD_O2, WS_V, 4 * MB)]
        o += head_off(GA, 4 * MB) + e_heads(rot, acc, 0, 1, "stA")
        o += head_off(GA) + e_v(rot, acc, 2, "stA")
        o += head_off(GA, 1024) + e_v(rot, acc, 3, "stA")
    else:
        o += [srd_text(SRD_O, WS_H, HSIZE), I(f"s_lshl_b32 s{GA}, s{S_C}, 1"), I(f"s_add_u32 s{GA}, s{GA}, s{S_WN}")]
        o += h_off(GA) + e_glu(rot, acc, [(0, 2), (1, 3)], "stA")
    return o


def epilogue_b_h(typ):
    T = S_T
    GA, GB = T + 6, T + 7
    rot = Rot()
    o = tok0() + [srd_text(SRD_O, WS_H, HSIZE)]
    if typ == "Q":
        o += [I(f"s_lshl_b32 s{GA}, s{S_C}, 1"), I(f"s_add_u32 s{GA}, s{GA}, s{S_WN}"), I(f"s_add_u32 s{GA}, s{GA}, 80")]
        o += h_off(GA) + e_glu(rot, acc, [(4, 6), (5, 7)], "stB")
    else:
        o += [I(f"s_lshl_b32 s{T + 2}, s{S_WN}, 3"), I(f"v_add_u32 v{V_T1}, s{T + 2}, v{V_L16}"),
              I(f"s_mul_i32 s{GB}, s{S_C}, 3"), I(f"s_add_u32 s{GB}, s{GB}, 32"), I(f"s_and_b32 s{T + 2}, s{S_C}, 1"),
              I(f"s_add_u32 s{GA}, s{GB}, s{T + 2}"), I(f"s_add_u32 s{GA}, s{GA}, s{S_WN}"),
              I(f"s_xor_b32 s{T + 2}, s{T + 2}, 1"), I(f"s_lshl_b32 s{T + 2}, s{T + 2}, 1"),
              I(f"s_add_u32 s{GB}, s{GB}, s{T + 2}")]
        o += h_off(GA) + e_glu(rot, acc, [(4, 6), (5, 7)], "stB")
        o += h_off(GB) + e_glu(rot, acc, [(8, 9)], "stB")
    return o


def epilogue_b_h_q_phases():
    T = S_T
    GA = T + 6
    rot = Rot()
    pk = []
    for i in range(8):
        b = rot.next()
        d = 16 + 4 * i
        for t, (g, u) in enumerate(((4, 6), (5, 7))):
            xs = [(rd(pk, b + 4 + r, acc(g, i), r), rd(pk, b + 8 + r, acc(u, i), r)) for r in range(4)]
            for r in range(4):
                pk.append(I(f"v_mul_f32 v{b + 4 + r}, {xs[r][0]}, {xs[r][1]}"))
            pk.append(I(f"v_cvt_pk_bf16_f32 v{d + 2 * t}, v{b + 4}, v{b + 5}"))
            pk.append(I(f"v_cvt_pk_bf16_f32 v{d + 2 * t + 1}, v{b + 6}, v{b + 7}"))
    st = tok0() + [srd_text(SRD_O, WS_H, HSIZE), I(f"s_lshl_b32 s{GA}, s{S_C}, 1"), I(f"s_add_u32 s{GA}, s{GA}, s{S_WN}"),
                   I(f"s_add_u32 s{GA}, s{GA}, 80")] + h_off(GA) + [I(f"s_add_u32 s{T + 1}, s{T}, 4096")]
    for i in range(8):
        so = T if i < 4 else T + 1
        st.append(V(f"buffer_store_dwordx4 {vr(16 + 4 * i, 4)}, v{V_L16}, {sr(SRD_O, 4)}, s{so} offen offset:{(i & 3) * 1024} sc1", "stB"))
    return pk, st


def epilogue_b_g_phases():
    T = S_T
    GA, GB = T + 6, T + 7
    pk = []
    n = 0
    for i in range(8):
        b = 16 + 12 * (n & 1); n += 1
        d = 144 + 4 * i
        for t, (g, u) in enumerate(((4, 6), (5, 7))):
            xs = [(rd(pk, b + r, acc(g, i), r), rd(pk, b + 4 + r, acc(u, i), r)) for r in range(4)]
            for r in range(4):
                pk.append(I(f"v_mul_f32 v{b + r}, {xs[r][0]}, {xs[r][1]}"))
            pk.append(I(f"v_cvt_pk_bf16_f32 v{d + 2 * t}, v{b}, v{b + 1}"))
            pk.append(I(f"v_cvt_pk_bf16_f32 v{d + 2 * t + 1}, v{b + 2}, v{b + 3}"))
    for i in range(8):
        b = 16 + 12 * (n & 1); n += 1
        d = 176 + 2 * i
        for r in range(4):
            pk.append(I(f"v_mul_f32 v{b + r}, v{acc(8, i)[1] + r}, v{acc(9, i)[1] + r}"))
        pk.append(I(f"v_cvt_pk_bf16_f32 v{d}, v{b}, v{b + 1}"))
        pk.append(I(f"v_cvt_pk_bf16_f32 v{d + 1}, v{b + 2}, v{b + 3}"))
    su = tok0() + [srd_text(SRD_O, WS_H, HSIZE),
                   I(f"s_lshl_b32 s{T + 2}, s{S_WN}, 3"), I(f"v_add_u32 v192, s{T + 2}, v{V_L16}"),
                   I(f"s_mul_i32 s{GB}, s{S_C}, 3"), I(f"s_add_u32 s{GB}, s{GB}, 32"), I(f"s_and_b32 s{T + 2}, s{S_C}, 1"),
                   I(f"s_add_u32 s{GA}, s{GB}, s{T + 2}"), I(f"s_add_u32 s{GA}, s{GA}, s{S_WN}"),
                   I(f"s_xor_b32 s{T + 2}, s{T + 2}, 1"), I(f"s_lshl_b32 s{T + 2}, s{T + 2}, 1"),
                   I(f"s_add_u32 s{GB}, s{GB}, s{T + 2}")]
    su += h_off(GB) + [I(f"s_mov_b32 s{T + 2}, s{T}"), I(f"s_add_u32 s{T + 3}, s{T}, 4096")]
    su += h_off(GA) + [I(f"s_add_u32 s{T + 1}, s{T}, 4096")]
    st = []
    for i in range(8):
        so = T if i < 4 else T + 1
        st.append(V(f"buffer_store_dwordx4 {vr(144 + 4 * i, 4)}, v{V_L16}, {sr(SRD_O, 4)}, s{so} offen offset:{(i & 3) * 1024} sc1", "stB"))
        so = T + 2 if i < 4 else T + 3
        st.append(V(f"buffer_store_dwordx2 {vr(176 + 2 * i, 2)}, v192, {sr(SRD_O, 4)}, s{so} offen offset:{(i & 3) * 1024} sc1", "stB"))
    return pk, su, st


S_DST = [58, 59, 60, 61, 62, 63]
V_DST = 12


def dest_setup(a, typ):
    T = S_T
    t0, t1 = T + 8, T + 9
    a(f"""
    s_lshl_b32 s{t0}, s{S_RB}, 4
    s_lshl_b32 s{t1}, s{S_WM}, 3
    s_add_u32 s{t0}, s{t0}, s{t1}
    """)
    a(f"s_lshr_b32 s{t1}, s{t0}, 3")
    a(f"s_mul_i32 s{t1}, s{t1}, 112")
    if typ == "Q":
        a(f"""
        s_lshl_b32 s{T}, s{S_C}, 1
        s_add_u32 s{T}, s{T}, s{S_WN}
        s_lshl_b32 s{T + 1}, s{T}, 17
        s_lshl_b32 s{t0}, s{t0}, 10
        s_add_u32 s{T + 1}, s{T + 1}, s{t0}
        s_add_u32 s{S_DST[0]}, s{T + 1}, {WS_QK + 4 * MB}
        s_add_u32 s{S_DST[1]}, s{T + 1}, {WS_V}
        s_add_u32 s{t1}, s{t1}, s{T}
        s_add_u32 s{t1}, s{t1}, 80
        s_lshl_b32 s{t1}, s{t1}, 13
        s_add_u32 s{S_DST[2]}, s{t1}, {WS_H}
        s_lshr_b32 s{t0}, s{t0}, 13
        s_lshl_b32 s{t0}, s{t0}, 5
        s_add_u32 s{t0}, s{t0}, s{T}
        s_lshl_b32 s{t0}, s{t0}, 13
        s_add_u32 s{S_DST[3]}, s{t0}, {WS_O}
        s_lshl_b32 s{t0}, s{S_C}, 3
        s_add_u32 s{t0}, s{t0}, s{S_RB}
        s_lshl_b32 s{t0}, s{t0}, 2
        s_add_u32 s{t0}, s{t0}, s{S_W}
        s_lshl_b32 s{t0}, s{t0}, 13
        s_add_u32 s{S_DST[4]}, s{t0}, {WS_S}
        s_mov_b32 s{S_DST[5]}, s{S_DST[4]}
        """)
    else:
        a(f"""
        s_lshl_b32 s{T}, s{S_C}, 1
        s_add_u32 s{T}, s{T}, s{S_WN}
        s_add_u32 s{T}, s{T}, s{t1}
        s_lshl_b32 s{T}, s{T}, 13
        s_add_u32 s{S_DST[0]}, s{T}, {WS_H}
        s_mul_i32 s{T}, s{S_C}, 3
        s_add_u32 s{T}, s{T}, 32
        s_add_u32 s{t1}, s{t1}, s{T}
        s_and_b32 s{T}, s{S_C}, 1
        s_add_u32 s{T + 1}, s{t1}, s{T}
        s_add_u32 s{T + 1}, s{T + 1}, s{S_WN}
        s_lshl_b32 s{T + 1}, s{T + 1}, 13
        s_add_u32 s{S_DST[1]}, s{T + 1}, {WS_H}
        s_xor_b32 s{T}, s{T}, 1
        s_lshl_b32 s{T}, s{T}, 1
        s_add_u32 s{t1}, s{t1}, s{T}
        s_lshl_b32 s{t1}, s{t1}, 13
        s_add_u32 s{S_DST[2]}, s{t1}, {WS_H}
        s_mov_b32 s{S_DST[3]}, s{S_DST[0]}
        s_mov_b32 s{S_DST[4]}, s{S_DST[0]}
        s_mov_b32 s{S_DST[5]}, s{S_DST[0]}
        """)
    a(f"""
    v_and_b32 v{V_DST}, 31, v0
    v_lshlrev_b32 v{V_DST}, 7, v{V_DST}
    """)


def dest_entries(p):
    r = S_DST[p >> 1]
    o = [V(f"buffer_load_dword v{V_PF + 1}, v{V_DST}, {sr(SRD_DST2, 4)}, s{r} offen sc1", "pf")]
    if p & 1 == 0:
        o.append(I(f"s_add_u32 s{r}, s{r}, 4096"))
    if p == 3:
        o += [I(f"s_mov_b32 s{S_DST[0]}, s{S_DST[2]}"), I(f"s_mov_b32 s{S_DST[1]}, s{S_DST[3]}"),
              I(f"s_mov_b32 s{S_DST[2]}, s{S_DST[4]}"), I(f"s_mov_b32 s{S_DST[3]}, s{S_DST[5]}")]
    return o


SRD_DST2 = SRD_O2


def epilogue_b_q(a_q):
    rot = Rot()
    o = []
    for i in range(8):
        b = rot.next()
        xs = [f"v{acc(8, i)[1] + r}" for r in range(4)] + [f"v{acc(9, i)[1] + r}" for r in range(4)]
        for r, x in enumerate(xs):
            o.append(I(f"v_mul_f32 v{b + 4 + r}, {QSCALE:#x}, {x}"))
        e_pack8(o, [f"v{b + 4 + r}" for r in range(4)], [f"v{b + 8 + r}" for r in range(4)], b)
        for r in range(4):
            o.append(I(f"v_accvgpr_write_b32 a{a_q + 4 * i + r}, v{b + r}"))
    return o


def spread(entries, n0, n1):
    k = n1 - n0
    tot = sum(cost_of(e) for e in entries)
    out = {n: [] for n in range(n0, n1)}
    acc = 0
    for e in entries:
        n = min(n1 - 1, n0 + (acc * k) // max(1, tot))
        out[n].append(e)
        acc += cost_of(e)
    return {n: [l] for n, l in out.items()}
```

```python
from fz_common import *
from sched import *
import fz_k2 as old
from fz_k2 import (A_K, A_V, A_Q, V_MASK, V_ONE, NEG, qk_mfmas, pv_mfmas, softmax_valu, finalize, merge,
                   tile_ids, epi_s, S_RB128, S_CT, S_TILE, SRD_A, SRD_W0, SRD_W1, SRD_P, SRD_R, SRD_T,
                   G_XF, G_WF, V_X, V_SS, V_E, V_XA, V_OA, LDS_W)

S_XOFF, S_WOA, S_WOB, S_M0X, S_M0W, S_CNT = 48, 49, 50, 51, 52, 55
V_XD, V_WD = 2, 3
V_XR = [4, 5]
V_WR = [6, 10]
GS = 16384
OUTMOD = " sc1"


def wslot(j):
    return (j + 4) % 5


def g_reads(j1):
    par, slot = j1 & 1, j1 % 5
    k, so = (0, slot * GS) if slot < 4 else (1, 0)
    kw, sw = (0, wslot(j1) * GS) if wslot(j1) < 4 else (1, 0)
    xr = [f"ds_read_b128 {vr(G_XF[par] + 16 * t + 4 * i, 4)}, v{V_XR[k]} offset:{so + t * 8192 + i * 1024}"
          for t in range(2) for i in range(4)]
    wr = []
    for t in range(2):
        for jb in range(4):
            r = G_WF[par] + 16 * t + 4 * jb
            for u in range(2):
                wr.append(f"ds_read_b64_tr_b16 {vr(r + 2 * u, 2)}, v{V_WR[kw] + jb} offset:{sw + t * 4096 + u * 2048}")
    return xr, wr


def g_dma_x(st):
    o = (st % 5) * GS
    ops = []
    for i in range(4):
        setup = [f"s_add_u32 m0, s{S_M0X}, {o}"] if i == 0 else []
        ops.append((setup, f"buffer_load_dwordx4 v{V_XD}, {sr(SRD_A, 4)}, s{S_XOFF} offen offset:{i * 1024} sc1 lds"))
    return ops, [f"s_add_u32 s{S_XOFF}, s{S_XOFF}, 16384"]


def g_dma_w(st):
    o = wslot(st) * GS
    ops = []
    for G, srd_ in enumerate((SRD_W0, SRD_W1)):
        for pp, so in enumerate((S_WOA, S_WOB)):
            ops.append(([f"s_add_u32 m0, s{S_M0W}, {o + G * 8192 + pp * 1024}"],
                        f"buffer_load_dwordx4 v{V_WD}, {sr(srd_, 4)}, s{so} offen lds"))
    return ops, [f"s_add_u32 s{S_WOA}, s{S_WOA}, {64 * 2048}", f"s_add_u32 s{S_WOB}, s{S_WOB}, {64 * 2048}"]


def issue_entries(ops, post, tag):
    out = []
    for setup, ld in ops:
        for s in setup:
            out.append(I(s + "\ns_nop 0"))
        out.append(V(ld, tag))
    return out + [I(t) for t in post]


def g_substep(j, ns, extra=(), need=(), after=(), cfg={}):
    from g1v4 import dma_stream
    par = j & 1
    mf = []
    for t in range(2):
        for jb in range(4):
            for i in range(4):
                acc = ar(4 * (jb * 4 + i), 4)
                c = "0" if (j == 0 and t == 0) else acc
                mf.append(I(f"v_mfma_f32_16x16x32_bf16 {acc}, {vr(G_WF[par] + 16 * t + 4 * jb, 4)}, {vr(G_XF[par] + 16 * t + 4 * i, 4)}, {c}"))
    M = 32
    streams = []
    if j + 1 < ns:
        xr, wr = g_reads(j + 1)
        rds = []
        for k in range(8):
            rds += [xr[k], wr[2 * k], wr[2 * k + 1]]
        streams.append(([I(t) for t in rds], 0, M - cfg.get("g_rdend", 5)))
    if j + 5 < ns:
        jump = cfg.get("jumps", {}).get(j + 5)
        pre = []
        if jump is not None:
            pre = [I(f"s_mov_b32 s{S_XOFF}, {jump * 16384}"), I(f"s_mov_b32 s{S_WOA}, {jump * 131072}"), I(f"s_mov_b32 s{S_WOB}, {jump * 131072 + 16384}")]
        streams.append((pre + dma_stream([g_dma_x(j + 5), g_dma_w(j + 5)], ("g", j + 5)), 0, cfg.get("g_dmaend", M - 3)))
    for e in extra:
        if e:
            streams.append((list(e), 1, M - 1))
    fl = place(M, streams, cfg.get("g_cap", 8))
    if cfg.get("g_stag") is not None:
        w = cfg["g_stag"]
        fl = []
        if j + 1 < ns:
            for k, t in enumerate(rds):
                fl.append((k, I(t)))
        if j + 5 < ns:
            ox, px = g_dma_x(j + 5)
            ow, pw = g_dma_w(j + 5)
            for n, (setup, ld) in enumerate(ox + ow):
                p = min(4 * n + w, 31)
                for t in setup:
                    fl.append((p - 1, I(t)))
                fl.append((p, V(ld, ("g", j + 5))))
            fl.append((16 + w, I(px[0])))
            for t in pw:
                fl.append((31, I(t)))
        for e in extra:
            for k, t in enumerate(e):
                fl.append((min(31, 2 + k // 2), t))
        fl.sort(key=lambda t: t[0])
    if cfg.get("g_old"):
        fl = []
        if j + 1 < ns:
            for k, t in enumerate(rds):
                fl.append((k, I(t)))
        if j + 5 < ns:
            ox, px = g_dma_x(j + 5)
            ow, pw = g_dma_w(j + 5)
            for n, (setup, ld) in enumerate(ox + ow):
                p = 1 + 3 * n + (0 if n < 4 else 1)
                for t in setup:
                    fl.append((p - 1, I(t)))
                fl.append((p, V(ld, ("g", j + 5))))
            fl.append((12, I(px[0])))
            for t in pw:
                fl.append((28, I(t)))
        for e in extra:
            for k, t in enumerate(e):
                fl.append((min(31, 2 + k // 2), t))
        fl.sort(key=lambda t: t[0])
    if j + 1 < ns:
        tags = ([("g", j + 2)] if j + 2 < ns else []) + list(need)
        fl.append((31, W(tags)))
        fl.append((31, I("s_barrier")))
        for e in after:
            fl.append((31, e))
    return weave2(mf, fl)


def w_setup_parts(krows):
    T = S_T
    t0, t1, t2 = 14, 15, 187

    def ent(text):
        return [I(l.strip()) for l in text.split("\n") if l.strip()]
    p1 = ent(f"""
    s_mov_b32 s{S_RB128}, s{S_C}
    s_mov_b32 s{S_CT}, s{S_RB}
    s_lshl_b32 s{S_TILE}, s{S_RB128}, 3
    s_add_u32 s{S_TILE}, s{S_TILE}, s{S_CT}
    s_lshl_b32 s{T}, s{S_W}, 11
    s_add_u32 s{S_M0W}, s{T}, {LDS_W}
    v_lshrrev_b32 v{t0}, 3, v0
    v_and_b32 v{t1}, 6, v{t0}
    v_and_b32 v{t2}, 7, v0
    v_xor_b32 v{t1}, v{t1}, v{t2}
    s_lshl_b32 s{T}, s{S_W}, 4
    v_add_u32 v{t0}, s{T}, v{t0}
    v_lshlrev_b32 v{t0}, 11, v{t0}
    v_lshlrev_b32 v{t1}, 4, v{t1}
    v_add_u32 v{V_WD}, v{t0}, v{t1}
    s_mov_b32 s{S_WOA}, 0
    s_mov_b32 s{S_WOB}, 16384
    s_lshl_b32 s{T + 2}, s{S_CT}, 8
    """)
    p1.append(I(f"""s_add_u32 s{SRD_W0}, s{S_PW}, s{T + 2}
    s_addc_u32 s{SRD_W0 + 1}, s{S_PW + 1}, 0
    s_sub_u32 s{SRD_W0 + 2}, {krows * 2048}, s{T + 2}
    s_mov_b32 s{SRD_W0 + 3}, 0x20000"""))
    p1.append(I(f"""s_add_u32 s{SRD_W1}, s{SRD_W0}, 128
    s_addc_u32 s{SRD_W1 + 1}, s{SRD_W0 + 1}, 0
    s_sub_u32 s{SRD_W1 + 2}, s{SRD_W0 + 2}, 128
    s_mov_b32 s{SRD_W1 + 3}, 0x20000"""))
    p2 = ent(f"""
    s_lshl_b32 s{S_M0X}, s{S_W}, 12
    v_add_u32 v{V_XD}, s{S_M0X}, v{V_L16}
    s_mov_b32 s{S_XOFF}, 0
    """)
    p3 = ent(f"""
    s_lshl_b32 s{T}, s{S_WM}, 12
    v_add_u32 v{V_XR[0]}, s{T}, v{V_L16}
    v_add_u32 v{V_XR[1]}, 0x10000, v{V_XR[0]}
    v_lshrrev_b32 v{t0}, 2, v0
    v_and_b32 v{t1}, 6, v{t0}
    v_lshlrev_b32 v{t0}, 7, v{t0}
    v_bfe_u32 v{t2}, v0, 1, 1
    v_lshlrev_b32 v{t2}, 4, v{t2}
    v_add_u32 v{t0}, v{t0}, v{t2}
    v_and_b32 v{t2}, 1, v0
    v_lshlrev_b32 v{t2}, 3, v{t2}
    v_add_u32 v{t0}, v{t0}, v{t2}
    s_lshl_b32 s{T}, s{S_WN}, 13
    s_add_u32 s{T}, s{T}, {LDS_W}
    """)
    for b in range(4):
        p3 += ent(f"""
        v_xor_b32 v{t2}, {2 * b}, v{t1}
        v_lshlrev_b32 v{t2}, 4, v{t2}
        v_add_u32 v{t2}, v{t2}, v{t0}
        v_add_u32 v{V_WR[0] + b}, s{T}, v{t2}
        v_add_u32 v{V_WR[1] + b}, 0x10000, v{V_WR[0] + b}
        """)
    return p1, p2, p3


def pro_w(s):
    from g1v4 import dma_stream
    return dma_stream([g_dma_w(s)], ("g", s))


def pro_x(s):
    from g1v4 import dma_stream
    return dma_stream([g_dma_x(s)], ("g", s))


def a_srd_entries(region, nstage):
    T = S_T
    return [I(f"s_mul_i32 s{T + 8}, s{S_RB128}, {nstage * 8192}"), I(f"s_add_u32 s{T + 8}, s{T + 8}, {region}"),
            I(f"""s_add_u32 s{SRD_A}, s{S_WS}, s{T + 8}
            s_addc_u32 s{SRD_A + 1}, s{S_WS + 1}, 0
            s_mov_b32 s{SRD_A + 2}, {nstage * 8192}
            s_mov_b32 s{SRD_A + 3}, 0x20000""")]


def prologue_w_entries():
    out = []
    for s in range(5):
        out += issue_entries(*g_dma_w(s), ("g", s))
    return out


def prologue_x_entries():
    out = []
    for s in range(5):
        out += issue_entries(*g_dma_x(s), ("g", s))
    return out


def zero_acc():
    return [I(f"v_accvgpr_write_b32 a{r}, 0") for r in range(64)]


def first_frags():
    out = [W([("g", 0)], lgkm=False), I("s_barrier")]
    xr, wr = g_reads(0)
    out += [I(t) for t in xr + wr]
    out += [W([("g", 1)]), I("s_barrier")]
    return out


S_KV = [53, 54, 55, 68, 69, 70]


def kv_setup_entries():
    T = S_T
    o = [I(f"s_lshl_b32 s{T}, s{S_C}, 1"), I(f"s_add_u32 s{T}, s{T}, s{S_WN}"), I(f"s_lshl_b32 s{T}, s{T}, 17"),
         I(f"s_lshl_b32 s{T + 1}, s{S_RB}, 4"), I(f"s_lshl_b32 s{T + 8}, s{S_WM}, 3"), I(f"s_add_u32 s{T + 1}, s{T + 1}, s{T + 8}")]
    for j in range(6):
        g = S_KV[j]
        o += [I(f"s_add_i32 s{g}, s{T + 1}, {4 * j - 16}"), I(f"s_max_i32 s{g}, s{g}, 0"),
              I(f"s_lshl_b32 s{g}, s{g}, 10"), I(f"s_add_u32 s{g}, s{g}, s{T}")]
    return o


def kv_load_lists(srd_qk, srd_v):
    T = S_T
    ks, vs = [], []
    for j in range(6):
        g = S_KV[j]
        ks += [I(f"s_add_u32 s{T + 8}, s{g}, {4 * MB}")] + \
              [V(f"buffer_load_dwordx4 {ar(A_K + 4 * (4 * j + k), 4)}, v{V_L16}, {sr(srd_qk, 4)}, s{T + 8} offen offset:{k * 1024} sc1", "kvK") for k in range(4)]
        vs += [V(f"buffer_load_dwordx4 {ar(A_V + 4 * (4 * j + k), 4)}, v{V_L16}, {sr(srd_v, 4)}, s{g} offen offset:{k * 1024} sc1", "kvV") for k in range(4)]
    return ks, vs


def attention_compute(a, cfg, mid=None, pre1=None):
    T = S_T
    a(f"""
    s_lshl_b32 s{T}, s{S_C}, 1
    s_add_u32 s{T}, s{T}, s{S_WN}
    s_lshl_b32 s{T + 1}, s{S_RB}, 4
    s_lshl_b32 s{T + 2}, s{S_WM}, 3
    s_add_u32 s{T + 1}, s{T + 1}, s{T + 2}
    s_lshr_b32 s{T + 4}, s{T + 1}, 3
    s_lshl_b32 s{T + 4}, s{T + 4}, 5
    s_add_u32 s{T + 4}, s{T + 4}, s{T}
    s_lshl_b32 s{T + 4}, s{T + 4}, 13
    s_add_u32 s{T + 5}, s{T + 4}, 4096
    s_cmp_lt_u32 s{T + 1}, 16
    s_cselect_b32 s{T + 6}, {NEG:#x}, 0
    s_cmp_lt_u32 s{T + 1}, 8
    s_cselect_b32 s{T + 7}, {NEG:#x}, 0
    v_and_b32 v246, 15, v0
    v_lshrrev_b32 v247, 4, v0
    v_lshlrev_b32 v247, 2, v247
    v_mov_b32 v250, {NEG:#x}
    v_mov_b32 v251, s{T + 6}
    v_mov_b32 v244, 0
    """)
    mk_srd(a, SRD_T, S_WS, WS_O, 4 * MB)
    for r in range(4):
        a(f"v_mov_b32 v{V_MASK + r}, s{T + 6}")
        a(f"v_mov_b32 v{V_MASK + 4 + r}, s{T + 7}")
        a(f"v_add_u32 v245, {r}, v247")
        a(f"v_cmp_gt_u32 vcc, v245, v246")
        a(f"v_mov_b32 v{V_ONE + r}, 0x3f803f80")
        a(f"s_nop 0")
        a(f"v_cndmask_b32 v{V_MASK + 8 + r}, v250, v251, vcc")
        a(f"v_cndmask_b32 v{V_MASK + 12 + r}, v244, v250, vcc")
    stamp(a, 5, cfg)
    a("s_nop 1")
    for m in qk_mfmas(0):
        a(m)
    a("s_nop 7")
    for i in range(9):
        mf = []
        if i == 1 and pre1:
            pre1()
        if i >= 1: mf += pv_mfmas(i - 1)
        if i + 1 < 8: mf += qk_mfmas(i + 1)
        if i < 8:
            mx, ex, cv = softmax_valu(i)
            valu = mx + ex
            for l in interleave(valu, merge(valu, mf, 0, len(valu) - 12)): a(l)
            if i >= 1:
                for l in finalize(i - 1): a(l)
            for l in cv: a(l)
            if i == cfg.get("mid_i", 1) and mid:
                mid()
        else:
            a("s_nop 1")
            for l in mf: a(l)
            a("s_nop 7")
            for l in finalize(i - 1): a(l)


A_X = 224


def out_addr_entries(dst, t0, t1, t2):
    T = S_T
    return [I(l.strip()) for l in f"""v_and_b32 v{t0}, 15, v0
    v_lshlrev_b32 v{t0}, 11, v{t0}
    s_lshl_b32 s{T}, s{S_WM}, 17
    s_lshl_b32 s{T + 1}, s{S_WN}, 7
    s_add_u32 s{T}, s{T}, s{T + 1}
    v_add_u32 v{t0}, s{T}, v{t0}
    v_lshrrev_b32 v{t1}, 4, v0
    v_and_b32 v{t2}, 1, v{t1}
    v_lshlrev_b32 v{t2}, 5, v{t2}
    v_add_u32 v{t0}, v{t0}, v{t2}
    v_lshrrev_b32 v{t2}, 1, v{t1}
    v_lshlrev_b32 v{t2}, 4, v{t2}
    v_add_u32 v{dst}, v{t0}, v{t2}""".split("\n")]


def tile_srd(reg, ptr):
    T = S_T
    return [I(f"s_lshl_b32 s{T}, s{S_RB128}, 18"), I(f"s_lshl_b32 s{T + 1}, s{S_CT}, 8"), I(f"s_add_u32 s{T}, s{T}, s{T + 1}"),
            I(f"""s_add_u32 s{reg}, s{ptr}, s{T}
            s_addc_u32 s{reg + 1}, s{ptr + 1}, 0
            s_sub_u32 s{reg + 2}, {128 * 2048}, s{T + 1}
            s_mov_b32 s{reg + 3}, 0x20000""")]


def load_x_entries():
    T = S_T
    o = tile_srd(SRD_R, S_PX) + out_addr_entries(60, 61, 62, 63)
    for i in range(4):
        o.append(I(f"s_mov_b32 s{T}, {i * 16 * 2048}"))
        for pj in range(2):
            o.append(V(f"buffer_load_dwordx4 {ar(A_X + 4 * (pj * 4 + i), 4)}, v60, {sr(SRD_R, 4)}, s{T} offen offset:{pj * 64}", "resid"))
    return o


def gather_x_entries():
    T = S_T
    o = tile_srd(SRD_R, S_PX)
    for i in range(4):
        o.append(I(f"s_mov_b32 s{T}, {i * 16 * 2048}"))
        for pj in range(2):
            o.append(V(f"buffer_load_dwordx4 {vr(V_X + 4 * (pj * 4 + i), 4)}, v{V_OA}, {sr(SRD_R, 4)}, s{T} offen offset:{pj * 64}", "resid"))
    return o


def repack_x(a):
    T = S_T
    for r in range(32):
        a(f"v_accvgpr_read_b32 v{V_X + r}, a{A_X + r}")
    a("s_nop 1")
    for e in unswap_x_entries():
        a(e[1])
    mk_srd(a, SRD_T, S_WS, WS_X2, 4 * MB)
    a(f"""
    s_lshl_b32 s{T}, s{S_TILE}, 2
    s_add_u32 s{T}, s{T}, s{S_W}
    s_lshl_b32 s{T}, s{T}, 13
    s_add_u32 s{T + 1}, s{T}, 4096
    """)
    for k in range(8):
        so = T if k < 4 else T + 1
        a(f"buffer_store_dwordx4 {vr(V_X + 4 * k, 4)}, v{V_L16}, {sr(SRD_T, 4)}, s{so} offen offset:{(k & 3) * 1024} sc1")


def out_setup_entries():
    return tile_srd(SRD_T, S_POUT) + out_addr_entries(V_OA, V_E, V_E + 1, V_E + 2)


def unswap_x_entries():
    o = []
    for k in range(8):
        b = V_X + 4 * k
        o.append(I(f"v_permlane16_swap_b32 v{b}, v{b + 2}"))
        o.append(I(f"v_permlane16_swap_b32 v{b + 1}, v{b + 3}"))
    return o


def s_srd_entry():
    return I(f"""s_add_u32 s{SRD_P}, s{S_WS}, {WS_S}
    s_addc_u32 s{SRD_P + 1}, s{S_WS + 1}, 0
    s_mov_b32 s{SRD_P + 2}, {8 * MB}
    s_mov_b32 s{SRD_P + 3}, 0x20000""")


def load_s_entries():
    T = S_T
    o = [I(f"s_lshl_b32 s{T}, s{S_TILE}, 2"), I(f"s_add_u32 s{T}, s{T}, s{S_W}"), I(f"s_lshl_b32 s{T}, s{T}, 13"),
         I(f"s_add_u32 s{T + 1}, s{T}, 4096")]
    for pj in range(2):
        for i in range(4):
            so = T if pj == 0 else T + 1
            o.append(V(f"buffer_load_dwordx4 {vr(V_SS + 4 * (pj * 4 + i), 4)}, v{V_L16}, {sr(SRD_P, 4)}, s{so} offen offset:{i * 1024} sc1", "s"))
    return o


def load_resid_entries():
    T = S_T
    o = [s_srd_entry(), I(f"s_lshr_b32 s{T}, s{S_RB128}, 1"), I(f"s_lshl_b32 s{T}, s{T}, 5"), I(f"s_lshl_b32 s{T + 1}, s{S_CT}, 2"),
         I(f"s_add_u32 s{T}, s{T}, s{T + 1}"), I(f"s_lshl_b32 s{T + 1}, s{S_WN}, 1"), I(f"s_add_u32 s{T}, s{T}, s{T + 1}"),
         I(f"s_lshl_b32 s{T}, s{T}, 4"), I(f"s_and_b32 s{T + 1}, s{S_RB128}, 1"), I(f"s_lshl_b32 s{T + 1}, s{T + 1}, 3"),
         I(f"s_add_u32 s{T}, s{T}, s{T + 1}"), I(f"s_lshl_b32 s{T + 1}, s{S_WM}, 2"), I(f"s_add_u32 s{T}, s{T}, s{T + 1}"),
         I(f"s_lshl_b32 s{T}, s{T}, 10"), I(f"s_add_u32 s{T}, s{T}, {WS_X2 - WS_S}"), I(f"s_add_u32 s{T + 1}, s{T}, 16384")]
    for pj in range(2):
        for i in range(4):
            so = T if pj == 0 else T + 1
            o.append(V(f"buffer_load_dwordx4 {vr(V_X + 4 * (pj * 4 + i), 4)}, v{V_L16}, {sr(SRD_P, 4)}, s{so} offen offset:{i * 1024} sc1", "resid"))
    return o


def final_compute(a):
    T = S_T
    a(f"s_mov_b32 s{T + 2}, 0xbfb8aa3b")
    n = 0
    for pj in range(2):
        for i in range(4):
            k = pj * 4 + i
            b = V_E + 20 * (n & 1); n += 1
            for t in range(2):
                jb = 2 * pj + t
                for r in range(4):
                    a(f"v_accvgpr_read_b32 v{b + 4 + r}, a{4 * (jb * 4 + i) + r}")
                for r in range(4):
                    a(f"v_mul_f32 v{b + 8 + r}, s{T + 2}, v{b + 4 + r}")
                for r in range(4):
                    a(f"v_exp_f32 v{b + 8 + r}, v{b + 8 + r}")
                for r in range(4):
                    sv = V_SS + 4 * k + 2 * t + (r >> 1)
                    if r & 1: a(f"v_and_b32 v{b + 12 + r}, 0xffff0000, v{sv}")
                    else: a(f"v_lshlrev_b32 v{b + 12 + r}, 16, v{sv}")
                for r in range(4):
                    a(f"v_add_f32 v{b + 8 + r}, 1.0, v{b + 8 + r}")
                for r in range(4):
                    a(f"v_rcp_f32 v{b + 8 + r}, v{b + 8 + r}")
                for r in range(4):
                    a(f"v_mul_f32 v{b + 4 + r}, v{b + 4 + r}, v{b + 12 + r}")
                for r in range(4):
                    xv = V_X + 4 * (pj * 4 + i) + 2 * t + (r >> 1)
                    if r & 1: a(f"v_and_b32 v{b + 12 + r}, 0xffff0000, v{xv}")
                    else: a(f"v_lshlrev_b32 v{b + 12 + r}, 16, v{xv}")
                for r in range(4):
                    a(f"v_fma_f32 v{b + 4 + r}, v{b + 4 + r}, v{b + 8 + r}, v{b + 12 + r}")
                a(f"v_cvt_pk_bf16_f32 v{b + 2 * t}, v{b + 4}, v{b + 5}")
                a(f"v_cvt_pk_bf16_f32 v{b + 2 * t + 1}, v{b + 6}, v{b + 7}")
            a("s_nop 1")
            a(f"v_permlane16_swap_b32 v{b}, v{b + 2}")
            a(f"v_permlane16_swap_b32 v{b + 1}, v{b + 3}")
            a(f"s_mov_b32 s{T + 3}, {i * 16 * 2048}")
            a(f"buffer_store_dwordx4 {vr(b, 4)}, v{V_OA}, {sr(SRD_T, 4)}, s{T + 3} offen offset:{pj * 64}{OUTMOD}")


def final_phase1(a):
    T = S_T
    a(f"s_mov_b32 s{T + 2}, 0xbfb8aa3b")
    a(f"s_mov_b32 s{T + 3}, 0xbfb8aa3b")
    a(f"s_mov_b32 s{T + 4}, 1.0")
    a(f"s_mov_b32 s{T + 5}, 1.0")
    for pj in range(2):
        for i in range(4):
            k = pj * 4 + i
            d = 80 + 8 * (k & 1)
            e = 16 + 8 * k
            for t in range(2):
                for r in range(4):
                    a(f"v_accvgpr_read_b32 v{d + 4 * t + r}, a{4 * ((2 * pj + t) * 4 + i) + r}")
            for q in range(4):
                a(f"v_pk_mul_f32 {vr(e + 2 * q, 2)}, {vr(d + 2 * q, 2)}, {sr(T + 2, 2)}")
            for r in range(8):
                a(f"v_exp_f32 v{e + r}, v{e + r}")
            a("s_nop 0")
            for q in range(4):
                a(f"v_pk_add_f32 {vr(e + 2 * q, 2)}, {vr(e + 2 * q, 2)}, {sr(T + 4, 2)}")
            for r in range(8):
                a(f"v_rcp_f32 v{e + r}, v{e + r}")
            a("s_nop 0")
            for q in range(4):
                a(f"v_pk_mul_f32 {vr(e + 2 * q, 2)}, {vr(e + 2 * q, 2)}, {vr(d + 2 * q, 2)}")


def final_phase2(a):
    T = S_T
    for pj in range(2):
        for i in range(4):
            k = pj * 4 + i
            e = 16 + 8 * k
            b = 96 + 20 * (k & 1)
            for q in range(4):
                a(f"v_lshlrev_b32 v{b + 2 * q}, 16, v{V_SS + 4 * k + q}")
                a(f"v_and_b32 v{b + 2 * q + 1}, 0xffff0000, v{V_SS + 4 * k + q}")
            for q in range(4):
                a(f"v_lshlrev_b32 v{b + 8 + 2 * q}, 16, v{V_X + 4 * k + q}")
                a(f"v_and_b32 v{b + 8 + 2 * q + 1}, 0xffff0000, v{V_X + 4 * k + q}")
            for q in range(4):
                a(f"v_pk_fma_f32 {vr(b + 2 * q, 2)}, {vr(b + 2 * q, 2)}, {vr(e + 2 * q, 2)}, {vr(b + 8 + 2 * q, 2)}")
            for q in range(4):
                a(f"v_cvt_pk_bf16_f32 v{b + 16 + q}, v{b + 2 * q}, v{b + 2 * q + 1}")
            a("s_nop 1")
            a(f"v_permlane16_swap_b32 v{b + 16}, v{b + 18}")
            a(f"v_permlane16_swap_b32 v{b + 17}, v{b + 19}")
            a(f"s_mov_b32 s{T + 3}, {i * 16 * 2048}")
            a(f"buffer_store_dwordx4 {vr(b + 16, 4)}, v{V_OA}, {sr(SRD_T, 4)}, s{T + 3} offen offset:{pj * 64}{OUTMOD}")
```

```python
def I(t): return ("i", t)
def V(t, tag): return ("v", t, tag)
def W(tags, lgkm=True): return ("w", tuple(tags), lgkm)


def weave(main, fillers):
    byp = {}
    for p, e in sorted(fillers, key=lambda t: t[0]):
        byp.setdefault(max(-1, min(p, len(main) - 1)), []).append(e)
    out = list(byp.get(-1, []))
    for i, m in enumerate(main):
        out.append(m)
        out += byp.get(i, [])
    return out


class Stream:
    def __init__(self):
        self.q = []
        self.done = 0
        self.steps = []

    def note(self, tag, n=1):
        self.q += [tag] * n

    def count(self, tags):
        last = -1
        for k, t in enumerate(self.q):
            if t in tags:
                last = k
        if last < self.done:
            return None
        return len(self.q) - 1 - last

    def add(self, entries):
        res = []
        for e in entries:
            if e[0] == "i":
                res.append(e[1])
            elif e[0] == "v":
                res.append(e[1])
                if e[2] is not None:
                    self.q.append(e[2])
            else:
                n = self.count(e[1])
                if n is not None and n > 63:
                    n = 63
                if n is not None:
                    self.done = max(self.done, len(self.q) - n)
                res.append(("wait", n, e[2]))
        self.steps.append(res)
        return len(self.steps) - 1

    @staticmethod
    def text(item):
        if isinstance(item, str):
            return item
        _, n, lg = item
        c = ([f"vmcnt({n})"] if n is not None else []) + (["lgkmcnt(0)"] if lg else [])
        return "s_waitcnt " + " ".join(c) if c else None

    def emit(self, a, first, last):
        for s in self.steps[first:last]:
            for it in s:
                t = self.text(it)
                if t: a(t)

    def emit_loop(self, a, first, last, period, label, counter):
        n = (last - first) // period
        assert n * period == last - first and n >= 1
        body = []
        for p in range(period):
            inst = [self.steps[first + k * period + p] for k in range(n)]
            ref = inst[0]
            merged = []
            for idx, it in enumerate(ref):
                if isinstance(it, str):
                    for o in inst[1:]:
                        assert o[idx] == it, (label, p, idx, it, o[idx])
                    merged.append(it)
                else:
                    ns = [o[idx][1] for o in inst]
                    real = [x for x in ns if x is not None]
                    merged.append(("wait", min(real) if real else None, it[2]))
            for o in inst:
                assert len(o) == len(ref)
            body.append(merged)
        a(f"s_mov_b32 s{counter}, 0")
        a.label(label)
        for s in body:
            for it in s:
                t = self.text(it)
                if t: a(t)
        a(f"s_add_u32 s{counter}, s{counter}, 1")
        a(f"s_cmp_lt_u32 s{counter}, {n}")
        a(f"s_cbranch_scc1 {label}")


def cost_of(e):
    if e[0] == "w":
        return 0
    c = 0
    for l in e[1].split("\n"):
        l = l.strip()
        if not l or l.endswith(":"):
            continue
        if l.startswith(("buffer_", "global_")):
            c += COST["vmem"]
        elif l.startswith(("v_exp", "v_rcp", "v_log", "v_rsq", "v_sqrt")):
            c += 8
        elif l.startswith("ds_"):
            c += COST["ds"]
        elif l.startswith("s_"):
            c += COST["salu"]
        else:
            c += 4
    return c


COST = {"vmem": 8, "ds": 4, "salu": 4}


def place(M, streams, cap=8):
    st = []
    for ents, s, e in streams:
        items = []
        n = len(ents)
        for k, it in enumerate(ents):
            sep = False
            if isinstance(it, tuple) and len(it) == 2 and it[1] == "sep" and isinstance(it[0], tuple):
                it, sep = it[0], True
            tgt = s + (k * (e - s + 1)) // max(1, n) if n else s
            items.append([it, tgt, sep, cost_of(it)])
        st.append({"items": items, "k": 0, "end": e, "block": -5})
    out = []
    for p in range(-1, M):
        used = 0
        while True:
            best = None
            for s in st:
                if s["k"] >= len(s["items"]) or s["block"] == p:
                    continue
                it = s["items"][s["k"]]
                rem = len(s["items"]) - s["k"]
                late = p >= s["end"] - (rem - 1) // 2 or p == M - 1
                if it[1] > p and not late:
                    continue
                if used + it[3] > cap and used > 0 and not (late and p >= s["end"]):
                    continue
                pr = (0 if late else 1, it[1])
                if best is None or pr < best[0]:
                    best = (pr, s)
            if best is None:
                break
            s = best[1]
            it = s["items"][s["k"]]
            out.append((p, it[0]))
            used += it[3]
            s["k"] += 1
            if it[2] and p < M - 1:
                s["block"] = p
            elif it[2]:
                out.append((p, I("s_nop 0")))
    for s in st:
        assert s["k"] == len(s["items"]), "unplaced fillers"
    return out


def weave2(main, fillers):
    byp = {}
    for p, e in fillers:
        byp.setdefault(p, []).append(e)
    out = list(byp.get(-1, []))
    for i, m in enumerate(main):
        out.append(m)
        out += byp.get(i, [])
    return out
```

```python
import sys
sys.path.insert(0, "gen"); sys.path.insert(0, "exp")
from fz_common import *
import fz_common
from sched import *
import g1v4 as g1
import k2v3 as k2
import hazard

NAME = "recurrent_scan__sliding_block__glu_gated_bilinear__prompt"
KNAME = NAME + "_kernel"
T = S_T


def stamp_e(k, cfg):
    a = Asm()
    stamp(a, k, cfg)
    return [I(l.strip()) for l in a.lines]


def merge_extra(*ds):
    out = {}
    for d in ds:
        for n, l in d.items():
            out.setdefault(n, []).extend(l)
    return out


V_PD_G, V_PO_G = 200, 202


def code_pf(v, t=None, dst=None):
    t = T + 2 if t is None else t
    l = uid("pfc")
    code = [I(f"""s_getpc_b64 {sr(t, 2)}
    {l}:
    s_sub_u32 s{t}, s{t}, {l}-fz_start
    s_subb_u32 s{t + 1}, s{t + 1}, 0""")]
    code += lines(f"""s_lshl_b32 s{t + 2}, s{S_TYP}, 2
    s_and_b32 s{t + 3}, s{S_C}, 3
    s_add_u32 s{t + 2}, s{t + 2}, s{t + 3}
    s_lshl_b32 s{t + 2}, s{t + 2}, 2
    s_and_b32 s{t + 3}, s{S_RB}, 3
    s_add_u32 s{t + 2}, s{t + 2}, s{t + 3}
    s_lshl_b32 s{t + 2}, s{t + 2}, 2
    s_add_u32 s{t + 2}, s{t + 2}, s{S_W}
    s_lshl_b32 s{t + 2}, s{t + 2}, 10
    v_and_b32 v{v}, 7, v0
    v_lshlrev_b32 v{v}, 7, v{v}
    v_add_u32 v{v}, s{t + 2}, v{v}
    s_mov_b32 s{t + 2}, fz_end-fz_start-4
    v_min_u32 v{v}, s{t + 2}, v{v}
    v_mov_b32 v{v + 1}, s{t + 1}""")
    code += [I(f"v_add_co_u32 v{v}, vcc, s{t}, v{v}\ns_nop 1\nv_addc_co_u32 v{v + 1}, vcc, 0, v{v + 1}, vcc"),
             V(f"global_load_dword v{dst if dst is not None else g1.V_PF + 1}, v[{v}:{v + 1}], off", "pf")]
    return code


def gemm1(a, typ, cfg):
    steps = g1.STEPS
    N, S = len(steps), g1.S_FULL
    D = 32 - S
    B0 = S + D
    st = Stream()
    for s in range(4): st.note(("st", s), 4)
    pro = [W([("st", 0)], lgkm=False), I("s_barrier")]
    xr, wr = g1.reads(0)
    pro += [I(t) for t in xr + wr]
    pro += [W([("st", 1)]), I("s_barrier")]
    pro += stamp_e(3, cfg)
    st.add(pro)
    extra, need, after = {}, {}, {}
    wo_srd = I(f"""s_mov_b32 s{g1.SRD_O2}, s{T + 12}
    s_mov_b32 s{g1.SRD_O2 + 1}, s{T + 13}
    s_mov_b32 s{g1.SRD_O2 + 2}, 8192
    s_mov_b32 s{g1.SRD_O2 + 3}, 0x20000""")
    def pf(v, srd, k):
        return [I(f"s_mov_b32 s{T + 14}, {k * 2048}"),
                V(f"buffer_load_dword v{g1.V_PF + 1}, v{v}, {sr(srd, 4)}, s{T + 14} offen", "pf")]
    NPF = cfg.get("npf", 4)
    LP0 = 4 if NPF <= 4 else 8

    def pf2(v, srd, k, n):
        return [I(f"s_mov_b32 s{T + 14}, {k * (8192 // n)}"),
                V(f"buffer_load_dword v{g1.V_PF + 1}, v{v}, {sr(srd, 4)}, s{T + 14} offen", "pf")]
    if cfg.get("pft", 1):
        extra = merge_extra(extra, {k: [pf2(g1.V_PFB, g1.SRD_O2, k, NPF)] for k in range(NPF)})
    if cfg.get("pf", 1):
        extra = merge_extra(extra, {S - 4 + k: [pf(g1.V_PF, g1.SRD_O, k)] for k in range(4)})
        extra = merge_extra(extra, {cfg.get("wo_n", S): [[wo_srd, V(f"buffer_load_dword v{g1.V_PF + 1}, v{g1.V_PFM}, {sr(g1.SRD_O2, 4)}, 0 offen", "pf")]]})
    if cfg.get("pfd", 0):
        nl_ = ((S - 4) - 4) // 4 * 4
        assert nl_ >= 12
        after[3] = [I(f"""s_mov_b32 s{g1.SRD_DST2}, s{S_WS}
        s_mov_b32 s{g1.SRD_DST2 + 1}, s{S_WS + 1}
        s_mov_b32 s{g1.SRD_DST2 + 2}, {48 * MB}
        s_mov_b32 s{g1.SRD_DST2 + 3}, 0x20000""")]
        extra = merge_extra(extra, {n: [g1.dest_entries((n - 4) & 3)] for n in range(4, 4 + nl_)})
    for n in cfg.get("pfc", [30]):
        extra = merge_extra(extra, {n: [code_pf(12)]})
    E = cfg.get("epiA_n", 4)
    if not cfg.get("noepiA"):
        extra = merge_extra(extra, g1.spread(g1.epilogue_a(typ), B0, B0 + E))
    after[B0 - 1] = stamp_e(9 if typ == "Q" else 6, cfg)
    need[B0 + E + 1] = ["stA"]
    after[B0 + E + 1] = [I(signal_text(K_A, 12, 14))]
    assert N % 4 == 0
    PI = N - cfg.get("poll_back", 5)
    p1, p2, p3 = k2.w_setup_parts(1024 if typ == "Q" else 3584)
    if typ == "Q":
        lbl = uid("norb")
        skip = f"s_cmp_eq_u32 s{S_RB}, 0\ns_cbranch_scc1 {lbl}\n"
        gid = f"s_sub_u32 s{T + 10}, s{S_RB}, 1\ns_max_i32 s{T + 10}, s{T + 10}, 0\ns_lshl_b32 s{T + 10}, s{T + 10}, 5\ns_add_u32 s{T + 10}, s{T + 10}, s{S_Q}"
        extra = merge_extra(extra, {PI: [lines(poll_setup_text(K_A, gid, f"v_mov_b32 v{V_PO}, 0")) + [V(poll_load_text(), "poll")]]})
        need[N - 3] = ["poll"]
        after[N - 3] = [I(skip + poll_check_text() + f"\n{lbl}:")]
        ks, vs = k2.kv_load_lists(g1.SRD_O, g1.SRD_O2)
        half = len(ks) // 2
        extra = merge_extra(extra, {N - 4: [p1 + k2.pro_w(0)], N - 3: [k2.pro_w(1)],
                                    N - 2: [k2.pro_w(2), k2.kv_setup_entries() + ks[:half]],
                                    N - 1: [ks[half:], p2 + p3 + k2.pro_w(3) + k2.pro_w(4)]})
    else:
        gid = f"s_lshr_b32 s{T + 10}, s{S_C}, 1\ns_lshl_b32 s{T + 10}, s{T + 10}, 5"
        lane = f"v_bfe_u32 v{V_PO}, v0, 1, 3\nv_lshlrev_b32 v{V_PO}, 2, v{V_PO}\nv_and_b32 v{V_PD}, 1, v0\n" \
               f"v_add_u32 v{V_PO}, v{V_PO}, v{V_PD}\nv_add_u32 v{V_PO}, 2, v{V_PO}"
        extra = merge_extra(extra, {PI: [lines(poll_setup_text(K_A, gid, lane)) + [V(poll_load_text(), "poll")]]})
        need[N - 3] = ["poll"]
        after[N - 3] = [I(poll_check_text())]
        extra = merge_extra(extra, {
            N - 4: [p1 + k2.pro_w(0)],
            N - 3: [k2.pro_w(1) + k2.a_srd_entries(WS_H, 112) + p2],
            N - 2: [k2.pro_x(0) + k2.pro_w(2) + k2.pro_x(1)],
            N - 1: [k2.pro_x(2) + k2.pro_w(3) + k2.pro_x(3) + k2.pro_w(4) + k2.pro_x(4) + p3]})
    if cfg.get("bst2") and typ == "G":
        after[B0 + E + 1] = stamp_e(9, cfg) + after[B0 + E + 1]
        after[N - 2] = after.get(N - 2, []) + stamp_e(5, cfg)
    if cfg.get("trace"):
        for n in range(N - 1):
            after[n] = list(after.get(n, [])) + [I(f"s_mov_b32 m0, s{S_STAMP + 2}\ns_nop 3\nv_writelane_b32 v11, s{S_STAMP}, m0\ns_add_u32 s{S_STAMP + 2}, s{S_STAMP + 2}, 1\n{TRACE_OP} {sr(S_STAMP, 2)}")]
    if cfg.get("trace"):
        after[N - 2] = list(after[N - 2]) + [I("s_nop 1\nv_accvgpr_write_b32 a100, v11" if typ == "G" else "s_nop 0")]
    idx = {}
    for n in range(N):
        idx[n] = st.add(g1.substep(n, typ, extra.get(n, ()), need.get(n, ()), after.get(n, ()), cfg))
    nl = ((S - 4) - LP0) // 4 * 4
    st.emit(a, 0, idx[LP0])
    if nl >= 4:
        st.emit_loop(a, idx[LP0], idx[LP0 + nl], 4, f"g1_loop_{typ}", g1.S_CNT)
    st.emit(a, idx[LP0 + nl], idx[N - 1] + 1)
    return st


def lines(text):
    return [I(l.strip()) for l in text.split("\n") if l.strip()]


def gemm3(a, st, ns, tag, cfg, extra=None, need=None, after=None, loops=()):
    extra, need, after = extra or {}, need or {}, after or {}
    i0 = st.add(k2.first_frags() + stamp_e(7, cfg))
    st.emit(a, i0, i0 + 1)
    import copy as _c
    base = _c.deepcopy(st)
    if cfg.get("trace"):
        after = dict(after)
        for j in range(ns - 1):
            after[j] = list(after.get(j, [])) + [I(f"s_mov_b32 m0, s{S_STAMP + 3}\ns_nop 3\nv_writelane_b32 v252, s{S_STAMP}, m0\ns_add_u32 s{S_STAMP + 3}, s{S_STAMP + 3}, 1\n{TRACE_OP} {sr(S_STAMP, 2)}")]
    idx = {j: st.add(k2.g_substep(j, ns, extra.get(j, ()), need.get(j, ()), after.get(j, ()), cfg)) for j in range(ns)}
    idx[ns] = idx[ns - 1] + 1
    j = 0
    for lo, hi in loops:
        st.emit(a, idx[j], idx[lo])
        if cfg.get("stag4"):
            import copy
            for w in range(4):
                c2 = dict(cfg); c2["g_stag"] = w if cfg["stag4"] == 1 else 0
                st2 = Stream(); st2.q = list(st.q[:0])
                st2 = copy.deepcopy(base)
                id2 = {jj: st2.add(k2.g_substep(jj, ns, extra.get(jj, ()), need.get(jj, ()), after.get(jj, ()), c2 if lo <= jj < hi else cfg)) for jj in range(ns)}
                a.label(f"stag_{tag}_{w}")
                if w < 3:
                    a(f"s_cmp_eq_u32 s{S_W}, {w}")
                    a(f"s_cbranch_scc0 stag_{tag}_{w + 1}")
                st2.emit_loop(a, id2[lo], id2[hi], 10, f"g3_{tag}_{lo}_{w}", k2.S_CNT)
                if w < 3: a(f"s_branch stag_{tag}_end")
            a.label(f"stag_{tag}_end")
        else:
            st.emit_loop(a, idx[lo], idx[hi], 10, f"g3_{tag}_{lo}", k2.S_CNT)
        j = hi
    st.emit(a, idx[j], idx[ns])


def emit_entries(a, st, entries):
    i = st.add(entries)
    st.emit(a, i, i + 1)


TRACE_OP = "s_memtime"


def finish(a, cfg):
    if cfg.get("trace"):
        a("s_waitcnt vmcnt(0) lgkmcnt(0)")
        a(f"s_mov_b32 m0, s{S_STAMP + 3}\ns_nop 3\nv_writelane_b32 v252, s{S_STAMP}, m0")
        a(f"{TRACE_OP} {sr(S_STAMP, 2)}")
        a("s_waitcnt lgkmcnt(0)")
        a(f"s_add_u32 s{S_STAMP + 3}, s{S_STAMP + 3}, 1")
        a(f"s_mov_b32 m0, s{S_STAMP + 3}\ns_nop 3\nv_writelane_b32 v252, s{S_STAMP}, m0")
        mk_srd(a, SRD3, S_WS, WS_STAMP, 2 * MB)
        a(f"s_lshl_b32 s{T}, s2, 2")
        a(f"s_add_u32 s{T}, s{T}, s{S_W}")
        a(f"s_lshl_b32 s{T}, s{T}, 9")
        a("v_lshlrev_b32 v14, 2, v0")
        a("v_accvgpr_read_b32 v253, a100")
        a(f"buffer_store_dword v253, v14, {sr(SRD3, 4)}, s{T} offen")
        a(f"buffer_store_dword v252, v14, {sr(SRD3, 4)}, s{T} offen offset:256")
        a("s_endpgm")
        return
    if cfg.get("dbgst"):
        l = uid("dbg")
        a("s_waitcnt vmcnt(0)")
        stamp(a, 10, cfg)
        a(f"s_and_b32 s{T}, s2, 127")
        a(f"s_cmp_eq_u32 s{T}, 9")
        a(f"s_cbranch_scc0 {l}")
        a(f"s_cmp_eq_u32 s{S_W}, 0")
        a(f"s_cbranch_scc0 {l}")
        a(f"s_load_dwordx2 {sr(T + 2, 2)}, s[0:1], {KA_DBG}")
        a("s_waitcnt lgkmcnt(0)")
        mk_srd(a, SRD3, T + 2, 0, 256)
        a(f"s_lshl_b32 s{T}, s{S_TYP}, 5")
        order = [1, 2, 3, 4, 7, 8, 6, 10]
        for k, idx in enumerate(order):
            a(f"s_sub_u32 s{T + 1}, s{S_STAMP + 2 * idx}, s{S_STAMP}")
            a(f"v_mov_b32 v{16 + k}, s{T + 1}")
        a("v_mov_b32 v14, 0")
        a("s_mov_b64 exec, 1")
        for k in range(2):
            a(f"buffer_store_dwordx4 {vr(16 + 4 * k, 4)}, v14, {sr(SRD3, 4)}, s{T} offen offset:{16 * k}")
        a.label(l)
        a("s_endpgm")
        return
    if cfg.get("stamps"):
        a("s_waitcnt vmcnt(0)")
        stamp(a, 10, cfg)
        mk_srd(a, SRD3, S_WS, WS_STAMP, MB)
        a("s_waitcnt lgkmcnt(0)")
        a(f"s_lshl_b32 s{T}, s2, 2")
        a(f"s_add_u32 s{T}, s{T}, s{S_W}")
        a(f"s_lshl_b32 s{T}, s{T}, 7")
        for k in range(22):
            a(f"v_mov_b32 v{16 + k}, s{S_STAMP + k}")
        a("v_mov_b32 v38, 0\nv_mov_b32 v39, 0\nv_mov_b32 v14, 0")
        a("s_mov_b64 exec, 1")
        for k in range(6):
            a(f"buffer_store_dwordx4 {vr(16 + 4 * k, 4)}, v14, {sr(SRD3, 4)}, s{T} offen offset:{16 * k}")
    a("s_endpgm")


def gen(cfg, kname=KNAME):
    fz_common._uid[0] = 0
    global TRACE_OP
    TRACE_OP = "s_memrealtime" if cfg.get("trace") == "rt" else "s_memtime"
    g1.XSC = cfg.get("xsc", " sc1")
    g1.PFG = cfg.get("pfg", 7)
    g1.WNT = cfg.get("wnt", False)
    g1.IDXMAP = cfg.get("idxmap", 3)
    g1.LNNT = " nt" if cfg.get("lnnt") else ""
    k2.OUTMOD = cfg.get("outmod", " sc1")
    g1.PFT_LINES = 64 // cfg.get("npf", 4)
    g1.make_steps(cfg.get("S", 20))

    def hook(a_):
        for e in code_pf(12, T + 2):
            a_(e[1])
    g1.ENTRY_HOOK = hook if cfg.get("pfc_entry", 1) else None
    a = Asm()
    g1.entry(a, cfg)
    g1.read_bases(a)
    g1.layernorm(a, cfg)
    stamp(a, 1, cfg)
    if cfg.get("pfe", 0):
        g1.prefetch_early(a)
    g1.prefetch_setup(a)
    poll(a, K_XN, f"s_lshl_b32 s{T}, s{S_RB}, 5", "v_and_b32 v18, 31, v0", regs=(160, 162), drain=False)
    stamp(a, 2, cfg)
    for s in range(4):
        g1.old.issue(a, *g1.dma_x(s))
    if cfg.get("trace"):
        a(f"s_mov_b32 s{S_STAMP + 2}, 0\ns_mov_b32 s{S_STAMP + 3}, 0\nv_mov_b32 v11, 0\n{TRACE_OP} {sr(S_STAMP, 2)}\ns_waitcnt lgkmcnt(0)")
    a(f"s_cmp_eq_u32 s{S_TYP}, 1")
    a("s_cbranch_scc1 fz_g_path")

    if cfg.get("pfd", 0): g1.dest_setup(a, "Q")
    st = gemm1(a, "Q", cfg)
    stamp(a, 4, cfg)
    ks, vs = k2.kv_load_lists(g1.SRD_O2, g1.SRD_O2)
    pk, hst = g1.epilogue_b_h_q_phases()
    emit_entries(a, st, [I("s_nop 7")] + pk + vs + hst + g1.epilogue_b_q(k2.A_Q))
    if cfg.get("q_early", 1):
        emit_entries(a, st, [W(["kvK", "stB"], lgkm=False), I("s_barrier"), I(signal_text(K_B, 252, 254))])
    else:
        emit_entries(a, st, [W(["kvK"], lgkm=False)])

    def pre1():
        emit_entries(a, st, [W(["kvV"], lgkm=False)])

    def mid():
        if cfg.get("pfc_q", 0):
            emit_entries(a, st, code_pf(250, T + 12, 252))
        if cfg.get("q_early", 1):
            return
        st.note("o", cfg.get("mid_i", 2))
        emit_entries(a, st, [W(["stB"], lgkm=False), I("s_barrier"), I(signal_text(K_B, 252, 254))])
    if cfg.get("x_qexit"):
        mid()
        a("s_branch fz_q_done")
    k2.attention_compute(a, dict(cfg, mid_i=cfg.get("mid_i", 2)), mid, pre1)
    stamp(a, 6, cfg)
    signal(a, K_O)
    st = Stream()
    emit_entries(a, st, k2.a_srd_entries(WS_O, 32))
    poll(a, K_O, f"s_lshr_b32 s{T}, s{k2.S_RB128}, 1\ns_lshl_b32 s{T}, s{T}, 5",
         "v_bfe_u32 v18, v0, 1, 3\nv_lshlrev_b32 v18, 2, v18\nv_and_b32 v19, 1, v0\nv_add_u32 v18, v18, v19", regs=(240, 242), drain=False)
    emit_entries(a, st, k2.prologue_x_entries())
    gemm3(a, st, 16, "q", cfg)
    stamp(a, 8, cfg)
    k2.epi_s(a, cfg)
    signal(a, K_S)
    a(f"s_cmp_eq_u32 s2, 0")
    a("s_cbranch_scc0 fz_q_done")
    a(f"s_cmp_eq_u32 s{S_W}, 0")
    a("s_cbranch_scc0 fz_q_done")
    for k in range(4):
        poll(a, K_XN, f"s_mov_b32 s{T}, {64 * k}", "v_mov_b32 v18, v0", barrier=False)
    mk_srd(a, SRD_F, S_WS, WS_FLAG, 64)
    a(f"""
    v_mov_b32 v16, s{S_TAG}
    v_mov_b32 v17, s{S_TAG + 1}
    v_mov_b32 v18, 0
    s_mov_b64 exec, 1
    buffer_store_dwordx2 v[16:17], v18, {sr(SRD_F, 4)}, 0 offen sc1
    s_mov_b64 exec, -1
    """)
    a.label("fz_q_done")
    finish(a, cfg)

    a.label("fz_g_path")
    if cfg.get("pfd", 0): g1.dest_setup(a, "G")
    st = gemm1(a, "G", cfg)
    stamp(a, 4, cfg)
    pkg, sug, stg = g1.epilogue_b_g_phases()
    nsp = cfg.get("stB_n", 0)
    if nsp:
        emit_entries(a, st, [I("s_nop 7")] + pkg + sug)
    else:
        emit_entries(a, st, [I("s_nop 7")] + g1.epilogue_b_h("G"))
        nsp = 1
        stg = []
    if not (cfg.get("dst") or cfg.get("bst2")): stamp(a, 5, cfg)
    extra, need, after = {}, {}, {}
    for k, e in enumerate(stg):
        extra.setdefault((k * nsp) // len(stg), [[]])[0].append(e)
    need[nsp + 2] = ["stB"]
    after[nsp + 2] = [I(signal_text(K_B, 204, 206))]
    gidB = f"s_lshr_b32 s{T + 10}, s{k2.S_RB128}, 1\ns_lshl_b32 s{T + 10}, s{T + 10}, 5"
    lane16 = f"v_bfe_u32 v{V_PO_G}, v0, 1, 3\nv_lshlrev_b32 v{V_PO_G}, 2, v{V_PO_G}\nv_and_b32 v{V_PD_G}, 1, v0\nv_add_u32 v{V_PO_G}, v{V_PO_G}, v{V_PD_G}"
    cfg = dict(cfg, jumps={16: 40, 32: 16})
    extra.setdefault(5, []).append(lines(poll_setup_text(K_B, gidB, lane16, pd=V_PD_G, po=V_PO_G)))
    after[6] = list(after.get(6, [])) + [V(poll_load_text(V_PD_G, V_PO_G), "pollq")]
    need[10] = list(need.get(10, [])) + ["pollq"]
    after[10] = list(after.get(10, [])) + [I(poll_check_text(V_PD_G, V_PO_G))]
    extra[21] = [lines(poll_setup_text(K_B, gidB, lane16 + f"\nv_add_u32 v{V_PO_G}, 2, v{V_PO_G}", pd=V_PD_G, po=V_PO_G))]
    after[22] = [V(poll_load_text(V_PD_G, V_PO_G), "poll")]
    need[26] = ["poll"]
    after[26] = [I(poll_check_text(V_PD_G, V_PO_G))]
    extra[24] = [k2.out_setup_entries()]
    for j in cfg.get("pfc_g", [25]):
        extra.setdefault(j, []).append(code_pf(250, T + 4, 252))
    gidS = f"s_lshl_b32 s{T + 10}, s{S_RB}, 5\ns_add_u32 s{T + 10}, s{T + 10}, s{S_Q}\ns_sub_u32 s{T + 10}, s{T + 10}, 2"
    extra[49] = [lines(poll_setup_text(K_S, gidS, "v_mov_b32 v246, 0", pd=244, po=246))]
    after[50] = [V(poll_load_text(244, 246), "poll2")]
    extra[51] = [k2.load_resid_entries()] if cfg.get("rawx", 0) else [[k2.s_srd_entry()] + k2.gather_x_entries()]
    need[53] = ["poll2"]
    after[53] = [I(poll_check_text(244, 246))] if not cfg.get("x_qexit") else []
    extra[54] = [k2.load_s_entries()]
    if cfg.get("dst"):
        after[9] = stamp_e(5, cfg)
        after[10] += stamp_e(6, cfg)
        after[49] = stamp_e(9, cfg)
    gemm3(a, st, 56, "g", cfg, extra, need, after, loops=[(28, 48)])
    stamp(a, 8, cfg)
    if cfg.get("oldfinal"):
        emit_entries(a, st, [W(["s", "resid"], lgkm=False), I("s_nop 7")] + ([] if cfg.get("rawx", 0) else k2.unswap_x_entries()))
        if not (cfg.get("dst") or cfg.get("bst") or cfg.get("bst2")): stamp(a, 9, cfg)
        k2.final_compute(a)
    else:
        a("s_nop 7")
        k2.final_phase1(a)
        emit_entries(a, st, [W(["s", "resid"], lgkm=False)] + ([] if cfg.get("rawx", 0) else k2.unswap_x_entries()))
        if not (cfg.get("dst") or cfg.get("bst") or cfg.get("bst2")): stamp(a, 9, cfg)
        k2.final_phase2(a)

    finish(a, cfg)
    a.label("fz_end")
    return kernel_head(kname) + a.text() + kernel_desc(kname, 512, 102, 256)


HDR = """; Sliding-window attention block and bilinear GLU block on a shared layer norm:
; @launch grid=(256,1,1) block=(256,1,1) lds=163840
"""


def build_final(cfg, path):
    t = HDR + '.amdgcn_target "amdgcn-amd-amdhsa--gfx950"\n' + gen(cfg)
    e = hazard.check(t, path)
    if e:
        print(len(e), "hazards"); print("\n".join(e[:20]))
    open(path, "w").write(t)
    print(path, t.count("\n"), "lines", len(t), "bytes")


def build_dev(cfg, out):
    from asmlib import assemble
    t = '.amdgcn_target "amdgcn-amd-amdhsa--gfx950"\n' + gen(cfg, "fz_kernel")
    if cfg.get("x_wnt"):
        t = "\n".join(l.replace(" offen lds", " offen nt lds") if ("buffer_load_dwordx4" in l and " offen lds" in l) else l for l in t.split("\n"))
    if cfg.get("x_wsc1"):
        t = "\n".join(l.replace(" offen lds", " offen sc1 lds") if ("buffer_load_dwordx4" in l and " offen lds" in l) else l for l in t.split("\n"))
    if cfg.get("x_plainst"):
        t = "\n".join(l.replace(" sc1", "") if ("buffer_store_dwordx4" in l or ("buffer_store_dwordx2" in l and "s[72:75]" not in l)) else l for l in t.split("\n"))
    if cfg.get("x_ntst"):
        t = "\n".join(l.replace(" sc1", " sc1 nt") if ("buffer_store_dwordx4" in l or ("buffer_store_dwordx2" in l and "s[72:75]" not in l)) else l for l in t.split("\n"))
    e = hazard.check(t, out)
    if e:
        print(len(e), "hazards"); print("\n".join(e[:20]))
    assemble(t, out, [("fz_kernel", 102, 512, 256)])
    print(out, t.count("\n"), "lines", len(t), "bytes")


if __name__ == "__main__":
    import json
    variants = {"f5": {"stamps": 1}, "f5_cyc": {"stamps": "cyc"}}
    if len(sys.argv) > 1 and sys.argv[1].startswith("{"):
        variants = json.loads(sys.argv[1])
    if len(sys.argv) > 1 and sys.argv[1] == "final":
        build_final({}, f"cdna_kernels/{NAME}.s")
    elif len(sys.argv) > 2 and sys.argv[1] == "cand":
        for k, c in json.loads(sys.argv[2]).items():
            build_final(c, f"cand/{k}.s")
    else:
        for k, c in variants.items():
            build_dev(c, f"exp/{k}.co")
```
